```python
import torch

def _softmax(x, axis=-1):
    return torch.softmax(x, dim=axis)
def _gelu(x):
    return torch.nn.functional.gelu(x, approximate="tanh")
def _silu(x):
    return torch.nn.functional.silu(x)
def _sigmoid(x):
    return torch.sigmoid(x)
def _layernorm(x, axis=-1, eps=1e-5):
    m = x.mean(dim=axis, keepdim=True)
    v = x.var(dim=axis, keepdim=True, unbiased=False)
    return (x - m) / torch.sqrt(v + eps)
def _scatter_add(tgt, idx, src, axis=0):
    return tgt.clone().index_add_(axis, idx, src)
def _segment_sum(src, seg, n):
    out = torch.zeros((n,) + src.shape[1:], dtype=src.dtype)
    return out.index_add_(0, seg, src)
def _pad(x, pw):
    flat = tuple(v for pair in reversed(pw) for v in pair)
    return torch.nn.functional.pad(x, flat)

kernel_name = 'recurrent_scan__mha_block_cached__mixer_channel_mlp__prompt'

def setup_inputs():

    _w = (lambda a: (lambda t: t.to(torch.bfloat16) if t.is_floating_point() else t)(torch.as_tensor(a)))
    def _A_setup():
        B, Sq, D = 1, 2048, 512
        H, Sk, Dh = 32, 2048, 128
        return {
            "x": _w((lambda *s: torch.randn(*s, dtype=torch.bfloat16) * 0.05)(B, Sq, D)),
            "k_cache": _w((lambda *s: torch.randn(*s, dtype=torch.bfloat16) * 1.6)(B, H, Sk, Dh)),
            "v_cache": _w((lambda *s: torch.randn(*s, dtype=torch.bfloat16) * 0.8)(B, H, Sk, Dh)),
            "wq": _w((lambda *s: torch.randn(*s, dtype=torch.bfloat16) * 1.6)(D, H * Dh) * (D ** -0.5)),
            "wo": _w((lambda *s: torch.randn(*s, dtype=torch.bfloat16) * 0.8)(H * Dh, D) * ((H * Dh) ** -0.5)),
        }
    _A_in = _A_setup()

    def _B_setup():
        B, S, D, F = 1, 2048, 512, 1792
        return {
            "x": _w((lambda *s: torch.randn(*s, dtype=torch.bfloat16) * 0.05)(B, S, D)),
            "w1": _w((lambda *s: torch.randn(*s, dtype=torch.bfloat16) * 1.6)(D, F) * (D ** -0.5)),
            "b1": _w((lambda *s: torch.randn(*s, dtype=torch.bfloat16) * 0.8)(F)),
            "w2": _w((lambda *s: torch.randn(*s, dtype=torch.bfloat16) * 0.2)(F, D) * (F ** -0.5)),
            "b2": _w((lambda *s: torch.randn(*s, dtype=torch.bfloat16) * 0.2)(D)),
        }
    _B_in = _B_setup()

    return {
        "A_x": _A_in["x"],
        "A_k_cache": _A_in["k_cache"],
        "A_v_cache": _A_in["v_cache"],
        "A_wq": _A_in["wq"],
        "A_wo": _A_in["wo"],
        "B_x": _B_in["x"],
        "B_w1": _B_in["w1"],
        "B_b1": _B_in["b1"],
        "B_w2": _B_in["w2"],
        "B_b2": _B_in["b2"],
    }

def reference(A_x, A_k_cache, A_v_cache, A_wq, A_wo, B_x, B_w1, B_b1, B_w2, B_b2):
    def _A_ref(x, k_cache, v_cache, wq, wo):
        B, Sq, D = x.shape
        H, Dh = 32, 128
        q = (lambda x, *d: x.permute(*d))((x @ wq).reshape(B, Sq, H, Dh), 0, 2, 1, 3)
        scores = torch.einsum("bhqd,bhkd->bhqk", q, k_cache) * (Dh ** -0.5)
        p = _softmax(scores, axis=-1)
        o = torch.einsum("bhqk,bhkd->bhqd", p, v_cache)
        return (lambda x, *d: x.permute(*d))(o, 0, 2, 1, 3).reshape(B, Sq, H * Dh) @ wo

    def _B_ref(x, w1, b1, w2, b2):
        y = _layernorm(x, axis=-1)
        h = _gelu(torch.einsum("bsd,df->bsf", y, w1) + b1)
        return torch.einsum("bsf,fd->bsd", h, w2) + b2

    x = A_x
    xn = _layernorm(x, axis=-1)
    s = _A_ref(xn, A_k_cache, A_v_cache, A_wq, A_wo)
    g = _silu(_B_ref(xn, B_w1, B_b1, B_w2, B_b2))
    return x + s * g
```

```python
import re, sys

REG = re.compile(r'^(-|\|)?(abs\()?([vas])(\d+|\[(\d+):(\d+)\])\)?\|?$')
TRANS = ('v_exp_f32', 'v_log_f32', 'v_rcp_f32', 'v_rsq_f32', 'v_sqrt_f32', 'v_sin_f32', 'v_cos_f32')

def regs(op):
    op = op.strip()
    if op in ('vcc',): return {'vcc'}
    if op in ('m0', 'exec', 'scc'): return {op}
    m = REG.match(op)
    if not m: return set()
    c = m.group(3)
    if m.group(5) is not None: return {f'{c}{i}' for i in range(int(m.group(5)), int(m.group(6)) + 1)}
    return {f'{c}{m.group(4)}'}

class I:
    def __init__(self, text, ln):
        self.text, self.ln = text, ln
        t = text.split(None, 1)
        self.op = op = t[0]
        rest = t[1] if len(t) > 1 else ''
        parts = [p.strip() for p in rest.split(',')]
        ops = []
        self.mods = ''
        for i, p in enumerate(parts):
            w = p.split()
            if not w: continue
            ops.append(w[0])
            if len(w) > 1: self.mods += ' ' + ' '.join(w[1:])
        self.ops = ops
        R = lambda k: regs(ops[k]) if k < len(ops) else set()
        allr = lambda a: set().union(*[R(k) for k in range(a, len(ops))]) if len(ops) > a else set()
        self.rd, self.wr = set(), set()
        self.kind = 'salu'
        self.target = None
        self.states = 1
        base = op.replace('_e32', '').replace('_e64', '').replace('_dpp', '').replace('_sdwa', '')
        self.base = base
        if op.startswith('v_mfma') or op.startswith('v_smfmac'):
            self.kind = 'mfma'
            self.D, self.A, self.B = R(0), R(1), R(2)
            if op.startswith('v_smfmac'):
                self.C = R(0); self.B = self.B | R(3)
            else: self.C = R(3)
            self.passes = 8 if '32x32' in op else 4
            self.wr = self.D; self.rd = self.A | self.B | self.C
        elif op.startswith('v_'):
            self.kind = 'trans' if base in TRANS else 'valu'
            if base.startswith('v_permlane') and 'swap' in base:
                self.rd = allr(0); self.wr = allr(0)
            elif base in ('v_add_co_u32', 'v_sub_co_u32', 'v_addc_co_u32'):
                self.wr = R(0) | R(1); self.rd = allr(2)
            else:
                self.wr = R(0); self.rd = allr(1)
                if base in ('v_fmac_f32', 'v_dot2c_f32_bf16', 'v_writelane_b32') or 'dpp' in op or 'row_' in self.mods or 'quad_perm' in self.mods: self.rd |= R(0)
                if base.startswith('v_cmpx'): self.wr |= {'exec'}
            self.dpp = 'dpp' in op or 'row_' in self.mods or 'quad_perm' in self.mods
        elif op.startswith('ds_'):
            self.kind = 'lds'
            if op.startswith('ds_write'): self.rd = allr(0)
            else: self.wr = R(0); self.rd = allr(1)
        elif op.startswith('buffer_') or op.startswith('global_'):
            self.kind = 'vmem'
            self.dma = (' lds' in (' ' + self.mods + ' ').replace(' lds ', ' lds  ')) and op.startswith('buffer_load') or 'load_lds' in op
            self.store = 'store' in op or ('atomic' in op)
            if op.startswith('buffer_inv') or op.startswith('buffer_wbl2'): pass
            elif self.dma: self.rd = allr(0) | {'m0'}
            elif self.store:
                self.rd = allr(0)
                if 'atomic' in op and 'sc0' in self.mods: self.wr = R(0)
                self.data = R(0) if op.startswith('buffer_') else R(1)
            else: self.wr = R(0); self.rd = allr(1)
        elif op.startswith('s_load') or op.startswith('s_buffer_load') or op in ('s_memtime', 's_memrealtime'):
            self.kind = 'smem'; self.wr = R(0); self.rd = allr(1)
        elif op == 's_nop': self.states = int(ops[0], 0) + 1
        elif op == 's_waitcnt':
            self.kind = 'wait'
            m = re.search(r'vmcnt\((\d+)\)', rest); self.vm = int(m.group(1)) if m else None
            m = re.search(r'lgkmcnt\((\d+)\)', rest); self.lg = int(m.group(1)) if m else None
        elif op.startswith('s_cbranch') or op == 's_branch':
            self.kind = 'branch'; self.target = ops[0]
        elif op.startswith('s_cmp') or op.startswith('s_bitcmp'): self.rd = allr(0)
        elif op in ('s_barrier', 's_endpgm', 's_setprio', 's_sleep'): pass
        else:
            self.wr = R(0); self.rd = allr(1)
            if 'saveexec' in op: self.wr |= {'exec'}

def parse(text):
    kernels, cur, labels = {}, None, None
    for ln, line in enumerate(text.splitlines(), 1):
        line = line.split(';')[0].strip()
        if not line: continue
        if line.startswith('.section'): cur = None; continue
        if line.startswith('.'):
            if not line.endswith(':'): continue
        if line.endswith(':'):
            name = line[:-1]
            if name.endswith('_kernel'):
                cur = []; labels = {}; kernels[name] = (cur, labels)
            elif cur is not None: labels[name] = len(cur)
            continue
        if cur is not None: cur.append(I(line, ln))
    return kernels

def need(p, c):
    n = 0
    isv = lambda x: x.kind in ('valu', 'trans')
    vg = lambda s: {r for r in s if r[0] in 'va' and r != 'vcc'}
    sg = lambda s: {r for r in s if r[0] == 's' or r == 'vcc'}
    if isv(p):
        if c.kind == 'mfma' and vg(p.wr) & c.rd: n = max(n, 2)
        if c.kind == 'mfma' and 'exec' in p.wr: n = max(n, 4)
        if p.kind == 'trans' and c.kind == 'valu' and p.wr & c.rd: n = max(n, 1)
        if isv(c):
            if c.base in ('v_readfirstlane_b32', 'v_readlane_b32') and vg(p.wr) & c.rd: n = max(n, 1)
            if c.base.startswith('v_permlane') and vg(p.wr) & c.rd: n = max(n, 2)
            if c.dpp and vg(p.wr) & c.rd: n = max(n, 2)
            if sg(p.wr) & c.rd: n = max(n, 2)
        if c.kind == 'vmem' and sg(p.wr) & c.rd: n = max(n, 5)
        if c.kind in ('salu', 'branch', 'smem') and (sg(p.wr) & c.rd or (c.op in ('s_cbranch_vccz', 's_cbranch_vccnz') and 'vcc' in p.wr)): n = max(n, 5 if c.kind == 'branch' else 1)
    if p.kind == 'mfma':
        big = {4: 8, 8: 12}[p.passes]
        if c.kind == 'mfma':
            if p.D & (c.A | c.B): n = max(n, big)
            if p.D & c.C and not (p.D == c.C and p.passes == c.passes): n = max(n, big - 2)
            if p.D & c.D and not (p.D & c.C): n = max(n, big - 2)
        elif c.kind in ('valu', 'trans', 'lds', 'vmem'):
            if p.D & (c.rd | c.wr): n = max(n, big)
            if isv(c) and p.C & c.wr: n = max(n, {4: 3, 8: 7}[p.passes])
    if p.kind == 'salu' and 'm0' in p.wr and c.kind == 'vmem' and 'm0' in c.rd: n = max(n, 1)
    if p.kind == 'vmem' and p.store and len(getattr(p, 'data', ())) >= 3 and c.kind != 'vmem' and p.data & c.wr: n = max(n, 2)
    if p.kind == 'lds' and p.op.startswith('ds_write') and False: pass
    return n

def check_kernel(name, ins, labels):
    errs = []
    n = len(ins)
    pred = [[] for _ in range(n + 1)]
    for i, x in enumerate(ins):
        if x.op == 's_endpgm': continue
        if x.kind == 'branch':
            pred[labels[x.target]].append(i)
            if x.op == 's_branch': continue
        pred[i + 1].append(i)
    W = 13
    for ci, c in enumerate(ins):
        stack = [(p, 0) for p in pred[ci]]; seen = set()
        while stack:
            pi, d = stack.pop()
            if (pi, d) in seen: continue
            seen.add((pi, d))
            p = ins[pi]
            k = need(p, c)
            if k > d: errs.append(f'{name}: line {c.ln} [{c.text}] needs {k} states after line {p.ln} [{p.text}], has {d}')
            d2 = d + p.states
            if d2 < W: stack += [(q, d2) for q in pred[pi]]
    work = [(0, (), (), ())]; seen = set(); reported = set(); steps = 0
    while work:
        i, vm, lg, taken = work.pop()
        while i < n:
            steps += 1
            if steps > 3000000: errs.append(f'{name}: wait walk gave up'); return errs
            x = ins[i]
            if pred[i] != [i - 1]:
                key = (i, vm, lg)
                if key in seen: break
                seen.add(key)
            touch = x.rd | x.wr
            for q, nm in ((vm, 'vmcnt'), (lg, 'lgkmcnt')):
                for j in q:
                    pw = ins[j].wr
                    bad = pw & touch if not (x.kind == ins[j].kind and x.kind != 'smem') else pw & x.rd
                    if bad and (i, j) not in reported:
                        reported.add((i, j)); errs.append(f'{name}: line {x.ln} [{x.text}] touches {sorted(bad)[:3]} pending {nm} from line {ins[j].ln} [{ins[j].text}]')
            if x.kind == 'wait':
                if x.vm is not None: vm = vm[len(vm) - x.vm:] if x.vm and x.vm < len(vm) else (vm if x.vm else ())
                if x.lg is not None:
                    if any(ins[j].kind == 'smem' for j in lg): lg = lg if x.lg else ()
                    else: lg = lg[len(lg) - x.lg:] if x.lg and x.lg < len(lg) else (lg if x.lg else ())
            elif x.kind == 'vmem' and not x.op.startswith('buffer_inv'):
                vm = vm + (i,)
                if len(vm) > 63 and ('ovf', i) not in reported:
                    reported.add(('ovf', i)); errs.append(f'{name}: line {x.ln} more than 63 vmem outstanding')
            elif x.kind in ('lds', 'smem'): lg = lg + (i,)
            if x.op == 's_endpgm': break
            if x.kind == 'branch':
                t = labels[x.target]
                if x.op == 's_branch':
                    if t <= i and taken.count(i) >= 2: break
                    taken = taken + (i,); i = t; continue
                if t > i or taken.count(i) < 2: work.append((t, vm, lg, taken + (i,)))
            i += 1
    return errs

def check(text):
    errs = []
    for name, (ins, labels) in parse(text).items(): errs += check_kernel(name, ins, labels)
    return errs

if __name__ == '__main__':
    e = check(open(sys.argv[1]).read())
    for x in e[:60]: print(x)
    print(len(e), 'problems')
```

```python
import sys, math, struct

NAME = 'recurrent_scan__mha_block_cached__mixer_channel_mlp__prompt'
XN_OFF, ST_OFF, B1_OFF, CS_OFF = 0, 0x200000, 0x208000, 0x20A000
H_OFF, O_OFF, TS_OFF = 0x400000, 0x1000000, 0x2000000
H_SIZE, O_SIZE = 128 * 56 * 1024, 128 * 128 * 1024
def f2u(x): return struct.unpack('<I', struct.pack('<f', x))[0]
LOG2E = 1.4426950408889634

class E:
    def __init__(self): self.l, self.vml = [], []
    def __call__(self, s):
        for x in s.strip().split('\n'):
            x = x.strip()
            if x: self.l.append(x if x.endswith(':') or x.startswith('.') else '    ' + x)
    def vm(self, s, tag=None): self(s); self.vml.append(tag)
    def vmn(self, *tags):
        last = max(i for i, t in enumerate(self.vml) if t in tags)
        return len(self.vml) - 1 - last
    def vmwait(self, *tags, extra=''): self(f's_waitcnt vmcnt({min(63, self.vmn(*tags))}){extra}')
    def put(self, it):
        if callable(it): it()
        elif isinstance(it, tuple): self.vm(*it)
        else: self(it)
    def stream(self, mf, gaps):
        for i, m in enumerate(mf):
            self(m)
            for it in gaps.get(i, ()): self.put(it)
    def text(self): return '\n'.join(self.l) + '\n'

def R(c, b, n=4): return f'{c}[{b}:{b+n-1}]'
def mfma(d, a, b, c): return f'v_mfma_f32_16x16x32_bf16 {d}, {a}, {b}, {c}'

def srd(e, d, base, off, size):
    e(f's_add_u32 s{d}, s{base}, {off}\ns_addc_u32 s{d+1}, s{base+1}, 0\ns_mov_b32 s{d+2}, {size}\ns_mov_b32 s{d+3}, 0x20000')

def kdesc(name, vgpr, accum, sgpr=64):
    return f'''.p2align 6
.amdhsa_kernel {name}
  .amdhsa_next_free_vgpr {vgpr}
  .amdhsa_next_free_sgpr {sgpr}
  .amdhsa_accum_offset {accum}
  .amdhsa_group_segment_fixed_size 0
  .amdhsa_kernarg_size 104
  .amdhsa_user_sgpr_count 2
  .amdhsa_user_sgpr_kernarg_segment_ptr 1
  .amdhsa_system_sgpr_workgroup_id_x 1
.end_amdhsa_kernel
'''
def khead(e, name): e(f'.globl {name}\n.p2align 8\n.type {name},@function\n{name}:')

def stamp(e, opt, k):
    if opt.get('ts'): e(f's_memtime s[{64+2*k}:{65+2*k}]')
def stamp_flush(e, opt, n, ws, slot):
    if not opt.get('ts'): return
    e(f's_memrealtime s[{64+2*n}:{65+2*n}]\ns_waitcnt lgkmcnt(0)')
    srd(e, 96, ws, TS_OFF + slot * 0x20000, 0x20000)
    e('v_lshrrev_b32 v2, 6, v0\ns_lshl_b32 s3, s2, 2\nv_add_u32 v2, s3, v2\nv_lshlrev_b32 v2, 6, v2')
    for k in range(n + 2):
        e(f'v_mov_b32 v3, s{62+2*k}\nbuffer_store_dword v3, v2, s[96:99], 0 offen offset:{4*k}')
    e('s_waitcnt vmcnt(0)')

def red32(e, v, t):
    for m in ('quad_perm:[1,0,3,2]', 'quad_perm:[2,3,0,1]', 'row_half_mirror', 'row_mirror'):
        e(f's_nop 1\nv_add_f32_dpp v{v}, v{v}, v{v} {m} row_mask:0xf bank_mask:0xf')
    e(f'v_mov_b32 v{t}, v{v}\ns_nop 1\nv_permlane16_swap_b32 v{v}, v{t}\ns_nop 1\nv_add_f32 v{v}, v{v}, v{t}')
def rbf(e, v): e(f'v_cvt_pk_bf16_f32 v{v}, v{v}, v{v}\nv_and_b32 v{v}, 0xffff0000, v{v}')

def ln_stats(e, X, m, sd, t, t2):
    e(f'v_add_f32 v{m}, v{X}, v{X+1}')
    for i in range(2, 16): e(f'v_add_f32 v{m}, v{m}, v{X+i}')
    red32(e, m, t)
    e(f'v_mul_f32 v{m}, {f2u(1/512):#x}, v{m}')
    e(f'v_sub_f32 v{t2}, v{X}, v{m}\nv_mul_f32 v{sd}, v{t2}, v{t2}')
    for i in range(1, 16): e(f'v_sub_f32 v{t2}, v{X+i}, v{m}\nv_fmac_f32 v{sd}, v{t2}, v{t2}')
    red32(e, sd, t)
    e(f'v_mul_f32 v{sd}, {f2u(1/512):#x}, v{sd}')
    rbf(e, sd)
    e(f'v_add_f32 v{sd}, {f2u(1e-5):#x}, v{sd}')
    rbf(e, sd)
    e(f'v_sqrt_f32 v{sd}, v{sd}\ns_nop 0')
    rbf(e, sd)
    rbf(e, m)

def k1(e, opt):
    khead(e, 'prep_kernel')
    e('''s_cmp_ge_u32 s2, 284
    s_cbranch_scc1 K1_END
    s_load_dwordx2 s[4:5], s[0:1], 0
    s_load_dwordx4 s[8:11], s[0:1], 48
    s_load_dwordx2 s[6:7], s[0:1], 96
    s_waitcnt lgkmcnt(0)''')
    srd(e, 16, 6, 0, 0x400000)
    e('s_cmp_ge_u32 s2, 256\ns_cbranch_scc1 K1_COL')
    srd(e, 12, 4, 0, 0x200000)
    e('''v_lshrrev_b32 v1, 5, v0
    s_lshl_b32 s3, s2, 3
    v_add_u32 v1, s3, v1
    v_and_b32 v2, 31, v0
    v_lshlrev_b32 v3, 10, v1
    v_lshl_add_u32 v3, v2, 4, v3
    buffer_load_dwordx4 v[8:11], v3, s[12:15], 0 offen
    buffer_load_dwordx4 v[12:15], v3, s[12:15], 0 offen offset:512
    v_lshrrev_b32 v4, 4, v1
    v_lshlrev_b32 v4, 14, v4
    v_lshrrev_b32 v5, 2, v2
    v_lshl_add_u32 v4, v5, 10, v4
    v_and_b32 v5, 3, v2
    v_lshl_add_u32 v4, v5, 8, v4
    v_and_b32 v5, 15, v1
    v_lshl_add_u32 v4, v5, 4, v4
    v_add_u32 v5, 0x2000, v4
    v_lshlrev_b32 v6, 4, v1
    s_waitcnt vmcnt(0)''')
    X = 16
    def unpack():
        for i in range(8): e(f'v_lshlrev_b32 v{X+2*i}, 16, v{8+i}\nv_and_b32 v{X+2*i+1}, 0xffff0000, v{8+i}')
    unpack()
    ln_stats(e, X, 32, 33, 34, 35)
    e('v_rcp_f32 v33, v33')
    for i in range(16): e(f'v_sub_f32 v{X+i}, v{X+i}, v32')
    for i in range(8): e(f'v_cvt_pk_bf16_f32 v{8+i}, v{X+2*i}, v{X+2*i+1}')
    unpack()
    for i in range(16): e(f'v_mul_f32 v{X+i}, v{X+i}, v33')
    for i in range(8): e(f'v_cvt_pk_bf16_f32 v{8+i}, v{X+2*i}, v{X+2*i+1}')
    e('buffer_store_dwordx4 v[8:11], v4, s[16:19], 0 offen\nbuffer_store_dwordx4 v[12:15], v5, s[16:19], 0 offen')
    unpack()
    ln_stats(e, X, 38, 37, 34, 35)
    e(f'''v_rcp_f32 v36, v37
    v_mov_b32 v39, 0
    v_cmp_eq_u32 vcc, 0, v2
    s_mov_b32 s3, {ST_OFF}
    s_and_saveexec_b64 s[20:21], vcc
    buffer_store_dwordx4 v[36:39], v6, s[16:19], s3 offen
    s_waitcnt vmcnt(0)
    s_endpgm
    K1_COL:
    s_sub_u32 s3, s2, 256
    s_lshl_b32 s22, s3, 7''')
    srd(e, 12, 8, 0, 512 * 3584)
    srd(e, 24, 10, 0, 3584)
    e('''v_lshrrev_b32 v1, 3, v0
    v_and_b32 v2, 7, v0
    v_mul_u32_u24 v3, 3584, v1
    v_lshl_add_u32 v3, v2, 4, v3
    v_add_u32 v3, s22, v3
    v_lshlrev_b32 v4, 1, v0
    buffer_load_ushort v6, v4, s[24:27], s22 offen''')
    for i in range(16):
        e(f's_mov_b32 s23, {i*32*3584}\nbuffer_load_dwordx4 {R("v",16+4*i)}, v3, s[12:15], s23 offen')
    for j in range(8): e(f'v_mov_b32 v{8+j}, 0')
    for i in range(16):
        e(f's_waitcnt vmcnt({15-i})')
        for j in range(4):
            e(f'v_lshlrev_b32 v5, 16, v{16+4*i+j}\nv_add_f32 v{8+2*j}, v{8+2*j}, v5')
            e(f'v_and_b32 v5, 0xffff0000, v{16+4*i+j}\nv_add_f32 v{9+2*j}, v{9+2*j}, v5')
    e('''v_lshlrev_b32 v5, 5, v0
    ds_write_b128 v5, v[8:11]
    ds_write_b128 v5, v[12:15] offset:16
    s_waitcnt lgkmcnt(0)
    s_barrier
    v_cmp_gt_u32 vcc, 64, v0
    s_nop 0
    s_and_saveexec_b64 s[20:21], vcc
    s_cbranch_execz K1_END
    v_lshlrev_b32 v5, 2, v0''')
    for r in range(0, 32, 8):
        for k in range(8): e(f'ds_read_b32 v{16+r+k}, v5 offset:{(r+k)*256}')
        e('s_waitcnt lgkmcnt(0)')
    for r in range(1, 32): e(f'v_add_f32 v16, v16, v{16+r}')
    e(f'''v_lshlrev_b32 v6, 16, v6
    s_lshl_b32 s22, s3, 8
    s_add_u32 s23, s22, {B1_OFF}
    s_add_u32 s22, s22, {CS_OFF}
    buffer_store_dword v6, v5, s[16:19], s23 offen
    buffer_store_dword v16, v5, s[16:19], s22 offen
    s_waitcnt vmcnt(0)
    K1_END:
    s_endpgm''')
    return kdesc('prep_kernel', 80, 80)

def k2(e, opt):
    e.vml = []
    khead(e, 'attn_kernel')
    SK, SV, SWQ, SW1, SWS, SO, SH = 4, 8, 12, 16, 20, 24, 28
    sHEAD, sRB, sW, sW1K, sK, sV, sCNT, sT, sPASS, sXB, sQB = 32, 33, 34, 35, 36, 37, 38, 39, 40, 41, 42
    ONES, KA, VA, KD, VD, IDX, L16 = 4, 8, 12, 20, 21, 22, 23
    S, CI, L, P = 32, 48, 64, 128
    aO, aQ, aK, aV = 0, 128, 192, 224
    WQA, W1A, WQD, W1D, RS = 24, 28, 8, 9, 12
    AF, HA, QA = 32, 64, 128
    EB = 0x20000
    e('''s_cmp_ge_u32 s2, 256
    s_cbranch_scc1 K2_END
    s_load_dwordx4 s[44:47], s[0:1], 8
    s_load_dwordx2 s[48:49], s[0:1], 24
    s_load_dwordx2 s[50:51], s[0:1], 48
    s_load_dwordx2 s[52:53], s[0:1], 96''')
    if opt.get('ts'): e('s_memrealtime s[62:63]')
    stamp(e, opt, 0)
    e(f'''s_and_b32 s{sHEAD}, s2, 7
    s_lshl_b32 s{sHEAD}, s{sHEAD}, 2
    s_lshr_b32 s{sT}, s2, 3
    s_and_b32 s{sT}, s{sT}, 3
    s_add_u32 s{sHEAD}, s{sHEAD}, s{sT}
    s_lshr_b32 s{sRB}, s2, 5
    v_lshrrev_b32 v1, 6, v0
    v_and_b32 v2, 63, v0
    v_readfirstlane_b32 s{sW}, v1
    v_lshlrev_b32 v{L16}, 4, v2
    s_mov_b32 s{sPASS}, 0
    s_lshl_b32 s{sW1K}, s{sW}, 10
    s_lshl_b32 s{sQB}, s{sRB}, 4
    s_lshl_b32 s{sT}, s{sW}, 2
    s_add_u32 s{sQB}, s{sQB}, s{sT}
    s_lshl_b32 s{sXB}, s{sQB}, 14
    s_waitcnt lgkmcnt(0)''')
    srd(e, SWS, 52, 0, 0x400000)
    e(f's_lshl_b32 s{sT}, s{sHEAD}, 7')
    srd(e, SW1, 50, f's{sT}', 0)
    e(f'''s_sub_u32 s{SW1+2}, {512*3584}, s{sT}
    s_cmp_lt_u32 s{sHEAD}, 28
    s_cselect_b32 s{SW1+2}, s{SW1+2}, 0''')
    e(f'''v_lshrrev_b32 v1, 4, v2
    v_and_b32 v3, 15, v2
    s_lshl_b32 s{sT}, s{sQB}, 8
    s_add_u32 s{sT}, s{sT}, {ST_OFF}
    v_lshlrev_b32 v10, 4, v3
    v_lshlrev_b32 v11, 4, v1''')
    for qb in range(4): e.vm(f'buffer_load_dwordx4 {R("v",128+4*qb)}, v10, s[{SWS}:{SWS+3}], s{sT} offen offset:{256*qb}', 'small')
    e(f's_lshl_b32 s{sT}, s{sHEAD}, 8\ns_add_u32 s{sCNT}, s{sT}, {B1_OFF}\ns_add_u32 s{sT}, s{sT}, {CS_OFF}')
    for fb in range(4): e.vm(f'buffer_load_dwordx4 {R("v",144+4*fb)}, v11, s[{SWS}:{SWS+3}], s{sCNT} offen offset:{64*fb}', 'small')
    for fb in range(4): e.vm(f'buffer_load_dwordx4 {R("v",160+4*fb)}, v11, s[{SWS}:{SWS+3}], s{sT} offen offset:{64*fb}', 'small')
    e(f'''v_lshrrev_b32 v10, 3, v2
    s_lshl_b32 s{sT}, s{sW}, 3
    v_add_u32 v10, s{sT}, v10
    v_mul_u32_u24 v10, 3584, v10
    v_and_b32 v11, 1, v1
    s_and_b32 s{sT}, s{sW}, 1
    s_lshl_b32 s{sT}, s{sT}, 1
    v_or_b32 v11, s{sT}, v11
    v_lshlrev_b32 v11, 1, v11
    v_and_b32 v16, 7, v2
    v_xor_b32 v11, v11, v16
    v_lshl_add_u32 v{W1D}, v11, 4, v10''')
    def w1dma(cc, t, tag):
        return [f's_add_u32 m0, s{sW1K}, {EB + (cc & 1) * 16384 + t * 4096}', f's_mov_b32 s{sT}, {(128*cc + 32*t) * 3584}',
                (f'buffer_load_dwordx4 v{W1D}, s[{SW1}:{SW1+3}], s{sT} offen lds', tag)]
    def wqdma(cc, t, tag):
        return [f's_add_u32 m0, s{sW1K}, {cc * 32768 + t * 4096}', f's_mov_b32 s{sT}, {(128*cc + 16*t) * 8192}',
                (f'buffer_load_dwordx4 v{WQD}, s[{SWQ}:{SWQ+3}], s{sT} offen lds', tag)]
    def xnload(cc, qb, ks):
        pre = [f's_add_u32 s{sCNT}, s{sXB}, {qb * 16384 + cc * 4096}'] if ks == 0 else []
        return pre + [(f'buffer_load_dwordx4 {R("a", 64*cc + 16*qb + 4*ks)}, v{L16}, s[{SWS}:{SWS+3}], s{sCNT} offen offset:{1024*ks}', f'xn{cc}_{qb}')]
    def kdma(slot, t):
        return [f's_add_u32 m0, s{sW1K}, {slot * 32768 + t * 4096}',
                (f'buffer_load_dwordx4 v{KD}, s[{SK}:{SK+3}], s{sK} offen lds', 'kv'), f's_add_u32 s{sK}, s{sK}, 4096']
    def vdma(slot, t):
        return [f's_add_u32 m0, s{sW1K}, {65536 + slot * 32768 + t * 4096}',
                (f'buffer_load_dwordx4 v{VD}, s[{SV}:{SV+3}], s{sV} offen lds', 'kv'), f's_add_u32 s{sV}, s{sV}, 4096']
    def run(items):
        for it in items:
            if isinstance(it, tuple) and e.l[-1].strip().startswith('s_add_u32 m0'): e('s_nop 0')
            e.put(it)
    for t in range(4): run(w1dma(0, t, 'w0'))
    for qb in range(4):
        for ks in range(4): run(xnload(0, qb, ks))
    e(f's_lshl_b32 s{sT}, s{sHEAD}, 8')
    srd(e, SWQ, 48, f's{sT}', 0)
    e(f'''s_sub_u32 s{SWQ+2}, {512*8192}, s{sT}
    s_lshl_b32 s{sT}, s{sW}, 2
    v_add_u32 v10, s{sT}, v1
    v_lshlrev_b32 v11, 2, v1
    v_xor_b32 v11, v11, v3
    v_lshlrev_b32 v11, 4, v11
    v_lshl_add_u32 v{WQD}, v10, 13, v11''')
    for t in range(8): run(wqdma(0, t, 'w0'))
    for t in range(4): run(w1dma(1, t, 'w1'))
    for t in range(8): run(wqdma(1, t, 'w1'))
    e(f's_lshl_b32 s{sT}, s{sHEAD}, 19')
    srd(e, SK, 44, f's{sT}', 0x80000)
    srd(e, SV, 46, f's{sT}', 0x80000)
    srd(e, SO, 52, O_OFF, O_SIZE)
    srd(e, SH, 52, H_OFF, H_SIZE)
    e(f's_cmp_lt_u32 s{sHEAD}, 28\ns_cselect_b32 s{SH+2}, s{SH+2}, 0')
    e(f'''v_xor_b32 v11, v10, v3
    v_lshlrev_b32 v11, 4, v11
    v_lshl_add_u32 v{KD}, v1, 8, v11
    v_and_b32 v11, 7, v10
    v_lshlrev_b32 v11, 1, v11
    v_xor_b32 v11, v11, v3
    v_lshlrev_b32 v11, 4, v11
    v_lshl_add_u32 v{VD}, v1, 8, v11
    s_mov_b32 s{sK}, s{sW1K}
    s_mov_b32 s{sV}, s{sW1K}''')
    e(f'''v_lshrrev_b32 v10, 2, v3
    v_and_b32 v11, 3, v2
    v_lshl_add_u32 v16, v1, 3, v10''')
    for ds in range(4):
        e(f'v_xor_b32 v17, {ds}, v10\nv_lshl_add_u32 v17, v17, 2, v11\nv_lshlrev_b32 v17, 4, v17\nv_lshl_add_u32 v{WQA+ds}, v16, 8, v17')
    e(f'''v_lshrrev_b32 v17, 1, v10
    v_and_b32 v18, 1, v1
    v_lshl_add_u32 v17, v18, 1, v17
    v_lshlrev_b32 v18, 7, v16
    v_lshl_add_u32 v18, v11, 3, v18
    v_add_u32 v18, {EB}, v18''')
    for fb in range(4): e(f'v_xor_b32 v19, {fb}, v17\nv_lshl_add_u32 v{W1A+fb}, v19, 5, v18')
    e.vmwait('small')
    for fb in range(4):
        for qb in range(4):
            for r in range(4):
                d = HA + 16 * fb + 4 * qb + r
                e(f'v_mul_f32 v{d}, v{144+4*fb+r}, v{128+4*qb+1}')
                e(f'v_fma_f32 v{d}, -v{128+4*qb+2}, v{160+4*fb+r}, v{d}')
    for qb in range(4): e(f'v_mov_b32 v{RS+qb}, v{128+4*qb}')

    def aread(n):
        cc, blk = divmod(n, 12)
        out = []
        for ks in range(4):
            for u in range(2):
                d = AF + 16 * (n & 1) + 4 * ks + 2 * u
                if blk < 4: out.append(f'ds_read_b64_tr_b16 v[{d}:{d+1}], v{W1A+blk} offset:{(cc&1)*16384 + (32*ks+4*u)*128}')
                else:
                    ds, hb = divmod(blk - 4, 2)
                    out.append(f'ds_read_b64_tr_b16 v[{d}:{d+1}], v{WQA+ds} offset:{(cc&1)*32768 + (32*ks+4*u)*256 + 8*hb}')
        return out
    e.vmwait('w0')
    e('s_barrier')
    stamp(e, opt, 1)
    for x in aread(0): e(x)
    e('s_waitcnt lgkmcnt(0)')
    e.vmwait('xn0_0')
    bg = []
    for qb in range(4):
        for ks in range(4): bg.append((0, xnload(1, qb, ks)))
    bg += [(0, wqdma(2, t, 'w2')) for t in range(8)]
    for qb in range(4):
        for ks in range(4): bg.append((5, xnload(2, qb, ks)))
    bg += [(11, w1dma(2, t, 'w2')) for t in range(4)] + [(11, kdma(0, t)) for t in range(8)]
    bg += [(12, wqdma(3, t, 'w3')) for t in range(8)]
    for qb in range(4):
        for ks in range(4): bg.append((12, xnload(3, qb, ks)))
    bg += [(23, w1dma(3, t, 'w3')) for t in range(4)] + [(23, kdma(1, t)) for t in range(8)]
    bg += [(35, vdma(0, t)) for t in range(8)]
    zero = [f'v_accvgpr_write_b32 a{i}, 0' for i in range(128)]
    for n in range(48):
        cc, blk = divmod(n, 12)
        mf, gaps = [], {i: [] for i in range(16)}
        acc = HA + 16 * blk if blk < 4 else QA + 16 * (blk - 4)
        for qb in range(4):
            for ks in range(4):
                d = R('v', acc + 4 * qb)
                c = '0' if (blk >= 4 and cc == 0 and ks == 0) else d
                mf.append(mfma(d, R('v', AF + 16 * (n & 1) + 4 * ks), R('a', 64 * cc + 16 * qb + 4 * ks), c))
        first = 0
        if blk == 11 and cc < 3:
            gaps[0].append(lambda cc=cc: e.vmwait(f'w{cc+1}'))
            gaps[0].append('s_barrier')
            first = 1
            if cc == 1:
                for ds in range(4): gaps[12 + ds].append(f'v_add_u32 v{WQA+ds}, 0x10000, v{WQA+ds}')
        if n < 47:
            for i, x in enumerate(aread(n + 1)): gaps[first + i].append(x)
        if blk == 0:
            for qb in range(1, 4): gaps[4 * qb - 1].insert(0, lambda cc=cc, qb=qb: e.vmwait(f'xn{cc}_{qb}'))
        for slot in (9, 11, 13, 15):
            if bg and bg[0][0] <= n and not (blk == 0 and slot == 11):
                items = bg.pop(0)[1]
                k = [i for i, it in enumerate(items) if isinstance(it, tuple)][0]
                gaps[slot - 1] = items[:k] + gaps[slot - 1]
                gaps[slot] = gaps[slot] + items[k:]
        if n >= 24:
            for slot in (1, 3, 5, 7, 10, 12):
                if zero: gaps[slot].append(zero.pop(0))
        if n < 47:
            w = [lambda: e('s_waitcnt lgkmcnt(0)')]
            if blk == 11: w = [lambda cc=cc: e.vmwait(f'xn{cc+1}_0', extra=' lgkmcnt(0)')]
            gaps[15] = w + gaps[15]
        e.stream(mf, gaps)
    assert not bg and not zero
    stamp(e, opt, 2)
    c0 = -2 * math.sqrt(2 / math.pi) * LOG2E
    e(f's_mov_b32 s54, {f2u(c0):#x}\ns_mov_b32 s55, {f2u(c0 * 0.044715):#x}\nv_mov_b32 v16, s54')
    e(f's_mul_i32 s{sT}, s{sQB}, {56*1024}\ns_lshl_b32 s{sCNT}, s{sHEAD}, 11\ns_add_u32 s{sT}, s{sT}, s{sCNT}')
    for qb in range(4):
        for t in range(2):
            us = [HA + 16 * (2 * t + h) + 4 * qb + r for h in range(2) for r in range(4)]
            tm = [32 + 8 * t + i for i in range(8)]
            for u in us: e(f'v_mul_f32 v{u}, v{u}, v{RS+qb}')
            for u, x in zip(us, tm): e(f'v_mul_f32 v{x}, v{u}, v{u}')
            for u, x in zip(us, tm): e(f'v_fma_f32 v{x}, v{x}, s55, v16')
            for u, x in zip(us, tm): e(f'v_mul_f32 v{x}, v{x}, v{u}')
            for u, x in zip(us, tm): e(f'v_exp_f32 v{x}, v{x}')
            for u, x in zip(us, tm): e(f'v_add_f32 v{x}, 1.0, v{x}')
            for u, x in zip(us, tm): e(f'v_rcp_f32 v{x}, v{x}')
            for u, x in zip(us, tm): e(f'v_mul_f32 v{x}, v{x}, v{u}')
            o = 48 + 8 * (qb & 1) + 4 * t
            for i in range(4): e(f'v_cvt_pk_bf16_f32 v{o+i}, v{tm[2*i]}, v{tm[2*i+1]}')
            e.vm(f'buffer_store_dwordx4 {R("v",o)}, v{L16}, s[{SH}:{SH+3}], s{sT} offen offset:{1024*t}', 'hst')
        e(f's_add_u32 s{sT}, s{sT}, {56*1024}')
    e(f's_mov_b32 s54, {f2u(LOG2E / math.sqrt(128)):#x}')
    for ds in range(4):
        for qb in range(4):
            src = [QA + 16 * (2 * ds + hb) + 4 * qb + r for hb in range(2) for r in range(4)]
            for u in src: e(f'v_mul_f32 v{u}, s54, v{u}')
            for i in range(4): e(f'v_cvt_pk_bf16_f32 v{src[i]}, v{src[2*i]}, v{src[2*i+1]}')
            for i in range(4): e(f'v_accvgpr_write_b32 a{aQ + 16*qb + 4*ds + i}, v{src[i]}')
    e(f'''v_and_b32 v2, 63, v0
    v_lshrrev_b32 v1, 4, v2
    v_and_b32 v3, 15, v2''')
    for ds in range(4):
        e(f'v_add_u32 v24, {4*ds}, v1\nv_xor_b32 v24, v24, v3\nv_lshlrev_b32 v24, 4, v24\nv_lshl_add_u32 v{KA+ds}, v3, 8, v24')
    e(f'''v_lshrrev_b32 v24, 2, v2
    v_and_b32 v25, 7, v24
    v_and_b32 v26, 3, v2
    v_lshlrev_b32 v24, 8, v24
    v_lshl_add_u32 v24, v26, 3, v24
    v_add_u32 v24, 0x10000, v24''')
    for db in range(8): e(f'v_xor_b32 v26, {db}, v25\nv_lshl_add_u32 v{VA+db}, v26, 5, v24')
    e(f'''v_and_b32 v24, 2, v2
    v_cmp_eq_u32 vcc, 0, v24
    v_mov_b32 v25, 0x3f803f80
    v_and_b32 v24, 1, v2
    v_cndmask_b32 v{ONES}, 0, v25, vcc
    v_cmp_eq_u32 vcc, 0, v24
    v_mov_b32 v{ONES+1}, v{ONES}
    v_mov_b32 v{ONES+2}, v{ONES}
    v_mov_b32 v{ONES+3}, v{ONES}
    v_mov_b32 v25, 0x44444444
    v_mov_b32 v{IDX}, 0xeeeeeeee
    v_cndmask_b32 v{IDX}, v{IDX}, v25, vcc''')
    for i in range(16): e(f'v_mov_b32 v{L+i}, 0')

    def kread(slot, kb, buf):
        return [f'ds_read_b128 {R("a", aK + 16*buf + 4*ds)}, v{KA+ds} offset:{slot*32768 + kb*4096}' for ds in range(4)]
    def vread(slot, db, buf):
        return [f'ds_read_b64_tr_b16 a[{aV+16*buf+4*ks+2*u}:{aV+16*buf+4*ks+2*u+1}], v{VA+db} offset:{slot*32768 + (32*ks+16*u)*256}'
                for ks in range(4) for u in range(2)]
    def qk(buf, qb, sb, c):
        d = R('v', S + 4 * sb)
        return [mfma(d, R('a', aK + 16 * buf + 4 * ds), R('a', aQ + 16 * qb + 4 * ds), c if ds == 0 else d) for ds in range(4)]
    def rowmax_to_ci(src):
        for sw in ('v_permlane32_swap_b32', 'v_permlane16_swap_b32'):
            for qb in range(4): e(f'v_mov_b32 v{28+qb}, v{src+qb}')
            e('s_nop 0')
            for qb in range(4): e(f'{sw} v{src+qb}, v{28+qb}')
            e('s_nop 0')
            for qb in range(4): e(f'v_max_f32 v{src+qb}, v{src+qb}, v{28+qb}')
        for qb in range(4):
            for r in range(4): e(f'v_sub_f32 v{CI+4*qb+r}, 0, v{src+qb}')
    stamp(e, opt, 3)
    for x in kread(0, 0, 0): e(x)
    e('s_waitcnt lgkmcnt(0)')
    for qb in range(4):
        for x in qk(0, qb, qb, '0'): e(x)
    e('s_nop 7')
    for qb in range(4): e(f'v_max3_f32 v{24+qb}, v{S+4*qb}, v{S+4*qb+1}, v{S+4*qb+2}')
    for qb in range(4): e(f'v_max_f32 v{24+qb}, v{24+qb}, v{S+4*qb+3}')
    rowmax_to_ci(24)
    e('K2_ATT:')
    e('s_nop 1')

    def preg(par, qb, ks): return P + 64 * par + 16 * qb + 4 * ks
    def softmax_ops(gi, par):
        kb, qb = gi >> 2, gi & 3
        s = S + 4 * (gi & 3)
        p = preg(par, qb, kb >> 1) + 2 * (kb & 1)
        return ([f'v_exp_f32 v{s+r}, v{s+r}' for r in range(4)],
                [f'v_cvt_pk_bf16_f32 v{p+i}, v{s+2*i}, v{s+2*i+1}' for i in range(2)])

    def iteration(p, do_qk=True, do_pv=True, tail=None):
        dma_early = [kdma(p, t) for t in range(2, 8)] + [vdma(1 - p, t) for t in range(2, 8)]
        dma_late = [kdma(1 - p, t) for t in range(2)] + [vdma(p, t) for t in range(2)]
        pend = []
        for Q in range(8):
            mf, ex, cv = [], [], []
            for qb in range(4):
                gi = 4 * Q + qb
                base = len(mf)
                if do_qk: mf += qk(Q & 1, qb, gi & 3, R('v', CI + 4 * qb))
                if do_pv:
                    o = R('a', aO + 16 * Q + 4 * qb)
                    mf += [mfma(o, R('a', aV + 16 * (Q & 1) + 4 * ks), R('v', preg(p, qb, ks)), o) for ks in range(4)]
                if not do_pv:
                    if gi >= 2: ex.append((base, softmax_ops(gi - 2, 1 - p)))
                elif gi == 0: ex.append((base, softmax_ops(31, p)))
                elif do_qk: ex.append((base, softmax_ops(gi - 1, 1 - p)))
            n = len(mf)
            gaps = {i: [] for i in range(n + 4)}
            full = do_qk and do_pv
            reads = []
            if Q < 7:
                if do_qk: reads += kread(1 - p, Q + 1, (Q + 1) & 1)
                if do_pv: reads += vread(p, Q + 1, (Q + 1) & 1)
            elif do_qk:
                reads += kread(p, 0, 0) + vread(1 - p, 0, 0)
            if full:
                for base, (xs, cs) in ex:
                    for r in range(4): gaps[base + 2 * r].append(xs[r])
                odd = list(range(1, 32, 2))
                for i, x in enumerate(reads): gaps[odd[i]].append(x)
                dm = [dma_early.pop(0) for _ in range(4)] if Q < 3 else (dma_late if Q == 7 else [])
                for i, items in enumerate(dm):
                    g = odd[12 + i]
                    gaps[g - 1].insert(0, items[0]); gaps[g].append(items[1]); gaps[g + 1].insert(0, items[2])
                ready = pend + [(base + 3, cs[0]) for base, (xs, cs) in ex] + [(base + 7, cs[1]) for base, (xs, cs) in ex]
                ready.sort(key=lambda t: t[0]); pend = []
                free = [g for g in odd if not (dm and g >= odd[12])]
                for at, c in ready:
                    g = next((g for g in free if g >= at), None)
                    if g is None: pend.append((-1, c))
                    else: free.remove(g); gaps[g].append(c)
                t, sq = Q >> 2, Q & 3
                mf.append(f'v_smfmac_f32_16x16x64_bf16 {R("v", L+4*sq)}, {R("v", ONES)}, {R("v", preg(p, sq, 2*t), 8)}, v{IDX}')
                last = 32
                for _, c in pend: gaps[last].append(c)
                pend = []
            elif do_qk:
                for base, (xs, cs) in ex:
                    for r in range(4): gaps[base + r].append(xs[r])
                    gaps[base + 2].append(cs[0]); gaps[base + 4].append(cs[1])
                for i, x in enumerate(reads): gaps[1 + i].insert(0, x)
                gaps[15] += ['s_nop 0'] + gaps[16]
                if Q == 0: gaps[7].append('s_nop 0')
                if Q == 7:
                    xs, cs = softmax_ops(30, 1 - p)
                    for items, x in zip(dma_late, xs): gaps[15] += [items[0], x, items[1], items[2]]
                    gaps[15] += cs
                last = 15
            else:
                for base, (xs, cs) in ex:
                    for r in range(4): gaps[base + r].append(xs[r])
                    gaps[base + 4] += cs
                for i, x in enumerate(reads): gaps[5 + i].insert(0, x)
                if Q < 2:
                    for sq in range(4):
                        mf.append(f'v_smfmac_f32_16x16x64_bf16 {R("v", L+4*sq)}, {R("v", ONES)}, {R("v", preg(p, sq, 2*Q), 8)}, v{IDX}')
                last = len(mf) - 1
            if Q == 7 and do_qk:
                gaps[0] = ['s_waitcnt vmcnt(0)', 's_barrier'] + gaps[0]
            if reads: gaps[last].insert(0, 's_waitcnt lgkmcnt(0)')
            if Q == 7 and tail: gaps[last] += tail
            e.stream(mf, gaps)

    iteration(1, do_pv=False, tail=[f's_mov_b32 s{sCNT}, 7'])
    stamp(e, opt, 4)
    e('.p2align 6\nK2_LOOP:')
    iteration(0, tail=[f's_cmp_eq_u32 s{sCNT}, 0', 's_cbranch_scc1 K2_FIN'])
    iteration(1, tail=[f's_sub_u32 s{sCNT}, s{sCNT}, 1', 's_branch K2_LOOP'])
    e('K2_FIN:')
    stamp(e, opt, 5)
    iteration(1, do_qk=False)
    stamp(e, opt, 6)
    e(f's_mov_b32 s54, {f2u(2.0**60):#x}\ns_mov_b64 s[56:57], exec')
    for qb in range(4): e(f'v_add_f32 v{24+qb}, v{L+4*qb}, v{L+4*qb+1}')
    for qb in range(4): e(f'v_cmp_gt_f32 vcc, s54, v{24+qb}\nv_rcp_f32 v{24+qb}, v{24+qb}\ns_and_b64 s[56:57], s[56:57], vcc')
    e(f'''s_cmp_eq_u64 s[56:57], exec
    s_cselect_b32 s54, 0, 1
    s_lshl_b32 s55, s{sW}, 2
    s_add_u32 s55, s55, {EB}
    v_mov_b32 v28, s55
    v_mov_b32 v29, s54
    ds_write_b32 v28, v29
    s_lshl_b32 s{sT}, s{sQB}, 17
    s_lshl_b32 s{sCNT}, s{sHEAD}, 12
    s_add_u32 s{sT}, s{sT}, s{sCNT}''')
    for qb in range(4):
        for t in range(4):
            b = P + 8 * ((4 * qb + t) % 16)
            for h in range(2):
                for r in range(4): e(f'v_accvgpr_read_b32 v{b+4*h+r}, a{aO + 16*(2*t+h) + 4*qb + r}')
            for i in range(8): e(f'v_mul_f32 v{b+i}, v{b+i}, v{24+qb}')
            for i in range(4): e(f'v_cvt_pk_bf16_f32 v{b+i}, v{b+2*i}, v{b+2*i+1}')
            e(f'buffer_store_dwordx4 {R("v",b)}, v{L16}, s[{SO}:{SO+3}], s{sT} offen offset:{1024*t}')
        e(f's_add_u32 s{sT}, s{sT}, {128*1024}')
    e(f'''s_waitcnt lgkmcnt(0)
    s_barrier
    v_mov_b32 v28, {EB}
    ds_read_b128 v[28:31], v28
    s_waitcnt lgkmcnt(0)
    v_or_b32 v28, v28, v29
    v_or3_b32 v28, v28, v30, v31
    s_nop 0
    v_readfirstlane_b32 s54, v28
    s_nop 0
    s_andn2_b32 s54, s54, s{sPASS}
    s_cmp_lg_u32 s54, 0
    s_cbranch_scc1 K2_SLOW
    s_waitcnt vmcnt(0)''')
    stamp(e, opt, 7)
    stamp_flush(e, opt, 8, 52, 0)
    e('K2_END:\ns_endpgm')
    e(f'''K2_SLOW:
    s_mov_b32 s{sPASS}, 1
    s_mov_b32 s{sK}, s{sW1K}
    s_mov_b32 s{sV}, s{sW1K}
    s_mov_b32 s{sCNT}, 16
    s_waitcnt vmcnt(0)''')
    for qb in range(4): e(f'v_mov_b32 v{24+qb}, 0xff800000')
    e('K2_MAXL:\ns_barrier')
    for t in range(8): run(kdma(0, t))
    e('s_waitcnt vmcnt(0)\ns_barrier')
    for kb in range(8):
        for x in kread(0, kb, 0): e(x)
        e('s_waitcnt lgkmcnt(0)')
        for qb in range(4):
            for x in qk(0, qb, qb, '0'): e(x)
        e('s_nop 7')
        for qb in range(4): e(f'v_max3_f32 v{24+qb}, v{24+qb}, v{S+4*qb}, v{S+4*qb+1}')
        for qb in range(4): e(f'v_max3_f32 v{24+qb}, v{24+qb}, v{S+4*qb+2}, v{S+4*qb+3}')
    e(f's_sub_u32 s{sCNT}, s{sCNT}, 1\ns_cmp_lg_u32 s{sCNT}, 0\ns_cbranch_scc1 K2_MAXL')
    rowmax_to_ci(24)
    e(f's_mov_b32 s{sK}, s{sW1K}\ns_barrier')
    for t in range(8): run(kdma(0, t))
    for t in range(8): run(kdma(1, t))
    for t in range(8): run(vdma(0, t))
    for i in range(128): e(f'v_accvgpr_write_b32 a{i}, 0')
    for i in range(16): e(f'v_mov_b32 v{L+i}, 0')
    e('s_waitcnt vmcnt(0)\ns_barrier')
    for x in kread(0, 0, 0): e(x)
    e('s_waitcnt lgkmcnt(0)\ns_branch K2_ATT')
    return kdesc('attn_kernel', 512, 256, 102)

def k3(e, opt):
    e.vml = []
    khead(e, 'out_kernel')
    SX, SWO, SW2, SB2, SOUT, SO, SH = 4, 8, 12, 16, 20, 24, 28
    sW, sQB, sCT, sT, sLB, sA, sB = 32, 33, 34, 35, 36, 37, 38
    DV, RA, L16, AF, ACC = 4, 8, 12, 32, 128
    D = 6
    e('''s_cmp_ge_u32 s2, 256
    s_cbranch_scc1 K3_END
    s_load_dwordx2 s[44:45], s[0:1], 0
    s_load_dwordx2 s[46:47], s[0:1], 32
    s_load_dwordx4 s[48:51], s[0:1], 64
    s_load_dwordx2 s[54:55], s[0:1], 80
    s_load_dwordx2 s[52:53], s[0:1], 96''')
    if opt.get('ts'): e('s_memrealtime s[62:63]')
    stamp(e, opt, 0)
    e(f'''s_and_b32 s{sQB}, s2, 7
    s_lshl_b32 s{sQB}, s{sQB}, 2
    s_lshr_b32 s{sT}, s2, 3
    s_and_b32 s{sT}, s{sT}, 3
    s_add_u32 s{sQB}, s{sQB}, s{sT}
    s_lshl_b32 s{sQB}, s{sQB}, 2
    s_lshr_b32 s{sCT}, s2, 5
    v_lshrrev_b32 v1, 6, v0
    v_and_b32 v2, 63, v0
    v_readfirstlane_b32 s{sW}, v1
    v_lshlrev_b32 v{L16}, 4, v2
    v_lshrrev_b32 v1, 4, v2
    s_lshl_b32 s{sLB}, s{sW}, 15
    v_lshrrev_b32 v3, 3, v2
    v_lshlrev_b32 v3, 10, v3
    v_lshlrev_b32 v13, 1, v1
    v_and_b32 v14, 7, v2
    v_xor_b32 v13, v13, v14
    v_lshl_add_u32 v{DV}, v13, 4, v3
    s_lshl_b32 s{sT}, s{sCT}, 7
    v_add_u32 v{DV}, s{sT}, v{DV}''')
    for n in range(1, 4): e(f'v_add_u32 v{DV+n}, {n*7168}, v{DV}')
    e('s_waitcnt lgkmcnt(0)')
    srd(e, SWO, 46, 0, 4096 * 1024)
    srd(e, SW2, 48, 0, 1792 * 1024)
    srd(e, SO, 52, O_OFF, O_SIZE)
    srd(e, SH, 52, H_OFF, H_SIZE)
    steps = [('o', k) for k in range(32)] + [('h', k) for k in range(14)]
    e(f'''s_lshl_b32 s40, s{sW}, 20
    s_lshl_b32 s41, s{sQB}, 17
    s_lshl_b32 s{sT}, s{sW}, 15
    s_add_u32 s41, s41, s{sT}
    s_mul_i32 s42, s{sW}, {14*32768}
    s_mul_i32 s43, s{sQB}, {56*1024}
    s_mul_i32 s{sT}, s{sW}, {14*1024}
    s_add_u32 s43, s43, s{sT}''')
    def loads(t):
        kind, k = steps[t]
        wsrd, bsrd, wb, bb, qs = (SWO, SO, 40, 41, 128 * 1024) if kind == 'o' else (SW2, SH, 42, 43, 56 * 1024)
        out = [[f's_add_u32 m0, s{sLB}, {(t % 8) * 4096}', f's_add_u32 s{sA}, s{wb}, {k * 32768}',
                (f'buffer_load_dwordx4 v{DV}, s[{wsrd}:{wsrd+3}], s{sA} offen lds', t)]]
        for n in range(1, 4): out.append([(f'buffer_load_dwordx4 v{DV+n}, s[{wsrd}:{wsrd+3}], s{sA} offen offset:{1024*n} lds', t)])
        for qb in range(4):
            out.append([f's_add_u32 s{sB}, s{bb}, {qb * qs + k * 1024}',
                        (f'buffer_load_dwordx4 {R("a", 16*(t%8) + 4*qb)}, v{L16}, s[{bsrd}:{bsrd+3}], s{sB} offen', t)])
        return out
    for t in range(D + 1):
        for items in loads(t):
            for it in items: e.put(it)
    srd(e, SX, 44, 0, 0x200000)
    srd(e, SB2, 50, 0, 1024)
    srd(e, SOUT, 54, 0, 0x200000)
    e(f'''v_lshrrev_b32 v13, 2, v2
    v_lshrrev_b32 v14, 1, v13
    v_and_b32 v14, 3, v14
    v_and_b32 v15, 3, v2
    v_lshlrev_b32 v13, 7, v13
    v_lshl_add_u32 v13, v15, 3, v13
    v_add_u32 v13, s{sLB}, v13''')
    for nb in range(4): e(f'v_xor_b32 v15, {nb}, v14\nv_lshl_add_u32 v{RA+nb}, v15, 5, v13')
    def aread(t):
        return [f'ds_read_b64_tr_b16 v[{AF+16*(t&1)+4*nb+2*u}:{AF+16*(t&1)+4*nb+2*u+1}], v{RA+nb} offset:{(t%8)*4096 + u*2048}'
                for nb in range(4) for u in range(2)]
    e.vmwait(0)
    stamp(e, opt, 1)
    for x in aread(0): e(x)
    e('s_waitcnt lgkmcnt(0)')
    e(f'''s_add_u32 s{sT}, s{sQB}, s{sW}
    s_lshl_b32 s{sT}, s{sT}, 14
    v_and_b32 v16, 15, v2
    v_lshlrev_b32 v16, 10, v16
    v_add_u32 v16, s{sT}, v16
    s_lshl_b32 s{sT}, s{sCT}, 7
    v_lshlrev_b32 v17, 3, v1
    v_add_u32 v17, s{sT}, v17
    v_add_u32 v16, v16, v17''')
    N = len(steps)
    for t in range(N):
        kind, k = steps[t]
        acc = ACC + (0 if kind == 'o' else 64)
        mf = []
        for nb in range(4):
            for qb in range(4):
                d = R('v', acc + 16 * nb + 4 * qb)
                mf.append(mfma(d, R('v', AF + 16 * (t & 1) + 4 * nb), R('a', 16 * (t % 8) + 4 * qb), '0' if k == 0 else d))
        gaps = {i: [] for i in range(16)}
        if t + 1 < N:
            gaps[0].append(lambda t=t: e.vmwait(t + 1))
            for i, x in enumerate(aread(t + 1)): gaps[i].append(x)
            gaps[15].append('s_waitcnt lgkmcnt(0)')
        if t + D + 1 < N:
            for i, items in enumerate(loads(t + D + 1)):
                gaps[8 + i] = gaps[8 + i] + items
        if t == N - D:
            for nb in range(4):
                gaps[8 + nb].append((f'buffer_load_dwordx2 v[{64+2*nb}:{65+2*nb}], v16, s[{SX}:{SX+3}], 0 offen offset:{32*nb}', 'x'))
                gaps[12 + nb].append((f'buffer_load_dwordx2 v[{72+2*nb}:{73+2*nb}], v17, s[{SB2}:{SB2+3}], 0 offen offset:{32*nb}', 'x'))
        e.stream(mf, gaps)
    stamp(e, opt, 2)
    e(f's_nop 7\ns_barrier\nv_add_u32 v13, s{sLB}, v{L16}\ns_lshl_b32 s{sT}, s{sW}, 10\nv_add_u32 v14, s{sT}, v{L16}\nv_add_u32 v15, 0x10000, v14')
    for i in range(32):
        e(f'ds_write_b128 v13, {R("v", ACC + 4*i)} offset:{1024*i}')
        if i % 8 == 7: e('s_waitcnt lgkmcnt(0)')
    e('s_barrier')
    for j in range(8):
        for w in range(4):
            e(f'ds_read_b128 {R("v", ACC + 16*j + 4*w)}, v{14 + (w >> 1)} offset:{(w & 1)*32768 + 4096*j}')
        if j % 2 == 1: e('s_waitcnt lgkmcnt(0)')
    for j in range(8):
        b = ACC + 16 * j
        for r in range(4): e(f'v_add_f32 v{b+r}, v{b+r}, v{b+4+r}\nv_add_f32 v{b+8+r}, v{b+8+r}, v{b+12+r}')
        for r in range(4): e(f'v_add_f32 v{b+r}, v{b+r}, v{b+8+r}')
    e(f's_waitcnt vmcnt(0)\ns_mov_b32 s{sT}, {f2u(-LOG2E):#x}')
    for nb in range(4):
        s, g, xs, bs = ACC + 16 * nb, ACC + 64 + 16 * nb, 80, 84
        for i in range(2):
            e(f'v_lshlrev_b32 v{xs+2*i}, 16, v{64+2*nb+i}\nv_and_b32 v{xs+2*i+1}, 0xffff0000, v{64+2*nb+i}')
            e(f'v_lshlrev_b32 v{bs+2*i}, 16, v{72+2*nb+i}\nv_and_b32 v{bs+2*i+1}, 0xffff0000, v{72+2*nb+i}')
        for r in range(4): e(f'v_add_f32 v{g+r}, v{g+r}, v{bs+r}')
        for r in range(4): e(f'v_mul_f32 v{g+4+r}, s{sT}, v{g+r}')
        for r in range(4): e(f'v_exp_f32 v{g+4+r}, v{g+4+r}')
        for r in range(4): e(f'v_add_f32 v{g+4+r}, 1.0, v{g+4+r}')
        for r in range(4): e(f'v_rcp_f32 v{g+4+r}, v{g+4+r}')
        for r in range(4): e(f'v_mul_f32 v{g+r}, v{g+r}, v{g+4+r}')
        for r in range(4): e(f'v_fma_f32 v{s+r}, v{s+r}, v{g+r}, v{xs+r}')
        e(f'v_cvt_pk_bf16_f32 v{s+4}, v{s}, v{s+1}\nv_cvt_pk_bf16_f32 v{s+5}, v{s+2}, v{s+3}')
        e(f'buffer_store_dwordx2 v[{s+4}:{s+5}], v16, s[{SOUT}:{SOUT+3}], 0 offen offset:{32*nb}')
    e('s_waitcnt vmcnt(0)')
    stamp(e, opt, 3)
    stamp_flush(e, opt, 4, 52, 1)
    e('K3_END:\ns_endpgm')
    return kdesc('out_kernel', 384, 256, 102)

def build(opt):
    e = E()
    head = open(f'cdna_kernels/{NAME}.s.ref').read().split('; Override launch')[0]
    head += '''; @launch kernel=prep_kernel grid=(284,1,1) block=(256,1,1) lds=8192
; @launch kernel=attn_kernel grid=(256,1,1) block=(256,1,1) lds=163840
; @launch kernel=out_kernel grid=(256,1,1) block=(256,1,1) lds=131072
'''
    e('.amdgcn_target "amdgcn-amd-amdhsa--gfx950"\n.text')
    d = k1(e, opt) + k2(e, opt) + k3(e, opt)
    return head + e.text() + '.section .rodata,"a"\n' + d

if __name__ == '__main__':
    out = sys.argv[1] if len(sys.argv) > 1 else f'cdna_kernels/{NAME}.s'
    opt = dict(a.split('=') if '=' in a else (a, 1) for a in sys.argv[2:])
    txt = build(opt)
    open(out, 'w').write(txt)
    sys.path.insert(0, 'dev')
    import chk
    errs = chk.check(txt)
    for x in errs[:40]: print(x)
    print(f'{out}: {len(txt)} bytes, {len(errs)} hazard problems')
```

```python
import re, sys

REG = re.compile(r'^(-|\|)?(abs\()?([vas])(\d+|\[(\d+):(\d+)\])\)?\|?$')
TRANS = ('v_exp_f32', 'v_log_f32', 'v_rcp_f32', 'v_rsq_f32', 'v_sqrt_f32', 'v_sin_f32', 'v_cos_f32')

def regs(op):
    op = op.strip()
    if op in ('vcc',): return {'vcc'}
    if op in ('m0', 'exec', 'scc'): return {op}
    m = REG.match(op)
    if not m: return set()
    c = m.group(3)
    if m.group(5) is not None: return {f'{c}{i}' for i in range(int(m.group(5)), int(m.group(6)) + 1)}
    return {f'{c}{m.group(4)}'}

class I:
    def __init__(self, text, ln):
        self.text, self.ln = text, ln
        t = text.split(None, 1)
        self.op = op = t[0]
        rest = t[1] if len(t) > 1 else ''
        parts = [p.strip() for p in rest.split(',')]
        ops = []
        self.mods = ''
        for i, p in enumerate(parts):
            w = p.split()
            if not w: continue
            ops.append(w[0])
            if len(w) > 1: self.mods += ' ' + ' '.join(w[1:])
        self.ops = ops
        R = lambda k: regs(ops[k]) if k < len(ops) else set()
        allr = lambda a: set().union(*[R(k) for k in range(a, len(ops))]) if len(ops) > a else set()
        self.rd, self.wr = set(), set()
        self.kind = 'salu'
        self.target = None
        self.states = 1
        base = op.replace('_e32', '').replace('_e64', '').replace('_dpp', '').replace('_sdwa', '')
        self.base = base
        if op.startswith('v_mfma') or op.startswith('v_smfmac'):
            self.kind = 'mfma'
            self.D, self.A, self.B = R(0), R(1), R(2)
            if op.startswith('v_smfmac'):
                self.C = R(0); self.B = self.B | R(3)
            else: self.C = R(3)
            self.passes = 8 if '32x32' in op else 4
            self.wr = self.D; self.rd = self.A | self.B | self.C
        elif op.startswith('v_'):
            self.kind = 'trans' if base in TRANS else 'valu'
            if base.startswith('v_permlane') and 'swap' in base:
                self.rd = allr(0); self.wr = allr(0)
            elif base in ('v_add_co_u32', 'v_sub_co_u32', 'v_addc_co_u32'):
                self.wr = R(0) | R(1); self.rd = allr(2)
            else:
                self.wr = R(0); self.rd = allr(1)
                if base in ('v_fmac_f32', 'v_dot2c_f32_bf16', 'v_writelane_b32') or 'dpp' in op or 'row_' in self.mods or 'quad_perm' in self.mods: self.rd |= R(0)
                if base.startswith('v_cmpx'): self.wr |= {'exec'}
            self.dpp = 'dpp' in op or 'row_' in self.mods or 'quad_perm' in self.mods
        elif op.startswith('ds_'):
            self.kind = 'lds'
            if op.startswith('ds_write'): self.rd = allr(0)
            else: self.wr = R(0); self.rd = allr(1)
        elif op.startswith('buffer_') or op.startswith('global_'):
            self.kind = 'vmem'
            self.dma = (' lds' in (' ' + self.mods + ' ').replace(' lds ', ' lds  ')) and op.startswith('buffer_load') or 'load_lds' in op
            self.store = 'store' in op or ('atomic' in op)
            if op.startswith('buffer_inv') or op.startswith('buffer_wbl2'): pass
            elif self.dma: self.rd = allr(0) | {'m0'}
            elif self.store:
                self.rd = allr(0)
                if 'atomic' in op and 'sc0' in self.mods: self.wr = R(0)
                self.data = R(0) if op.startswith('buffer_') else R(1)
            else: self.wr = R(0); self.rd = allr(1)
        elif op.startswith('s_load') or op.startswith('s_buffer_load') or op in ('s_memtime', 's_memrealtime'):
            self.kind = 'smem'; self.wr = R(0); self.rd = allr(1)
        elif op == 's_nop': self.states = int(ops[0], 0) + 1
        elif op == 's_waitcnt':
            self.kind = 'wait'
            m = re.search(r'vmcnt\((\d+)\)', rest); self.vm = int(m.group(1)) if m else None
            m = re.search(r'lgkmcnt\((\d+)\)', rest); self.lg = int(m.group(1)) if m else None
        elif op.startswith('s_cbranch') or op == 's_branch':
            self.kind = 'branch'; self.target = ops[0]
        elif op.startswith('s_cmp') or op.startswith('s_bitcmp'): self.rd = allr(0)
        elif op in ('s_barrier', 's_endpgm', 's_setprio', 's_sleep'): pass
        else:
            self.wr = R(0); self.rd = allr(1)
            if 'saveexec' in op: self.wr |= {'exec'}

def parse(text):
    kernels, cur, labels = {}, None, None
    for ln, line in enumerate(text.splitlines(), 1):
        line = line.split(';')[0].strip()
        if not line: continue
        if line.startswith('.section'): cur = None; continue
        if line.startswith('.'):
            if not line.endswith(':'): continue
        if line.endswith(':'):
            name = line[:-1]
            if name.endswith('_kernel'):
                cur = []; labels = {}; kernels[name] = (cur, labels)
            elif cur is not None: labels[name] = len(cur)
            continue
        if cur is not None: cur.append(I(line, ln))
    return kernels

def need(p, c):
    n = 0
    isv = lambda x: x.kind in ('valu', 'trans')
    vg = lambda s: {r for r in s if r[0] in 'va' and r != 'vcc'}
    sg = lambda s: {r for r in s if r[0] == 's' or r == 'vcc'}
    if isv(p):
        if c.kind == 'mfma' and vg(p.wr) & c.rd: n = max(n, 2)
        if c.kind == 'mfma' and 'exec' in p.wr: n = max(n, 4)
        if p.kind == 'trans' and c.kind == 'valu' and p.wr & c.rd: n = max(n, 1)
        if isv(c):
            if c.base in ('v_readfirstlane_b32', 'v_readlane_b32') and vg(p.wr) & c.rd: n = max(n, 1)
            if c.base.startswith('v_permlane') and vg(p.wr) & c.rd: n = max(n, 2)
            if c.dpp and vg(p.wr) & c.rd: n = max(n, 2)
            if sg(p.wr) & c.rd: n = max(n, 2)
        if c.kind == 'vmem' and sg(p.wr) & c.rd: n = max(n, 5)
        if c.kind in ('salu', 'branch', 'smem') and (sg(p.wr) & c.rd or (c.op in ('s_cbranch_vccz', 's_cbranch_vccnz') and 'vcc' in p.wr)): n = max(n, 5 if c.kind == 'branch' else 1)
    if p.kind == 'mfma':
        big = {4: 8, 8: 12}[p.passes]
        if c.kind == 'mfma':
            if p.D & (c.A | c.B): n = max(n, big)
            if p.D & c.C and not (p.D == c.C and p.passes == c.passes): n = max(n, big - 2)
            if p.D & c.D and not (p.D & c.C): n = max(n, big - 2)
        elif c.kind in ('valu', 'trans', 'lds', 'vmem'):
            if p.D & (c.rd | c.wr): n = max(n, big)
            if isv(c) and p.C & c.wr: n = max(n, {4: 3, 8: 7}[p.passes])
    if p.kind == 'salu' and 'm0' in p.wr and c.kind == 'vmem' and 'm0' in c.rd: n = max(n, 1)
    if p.kind == 'vmem' and p.store and len(getattr(p, 'data', ())) >= 3 and c.kind != 'vmem' and p.data & c.wr: n = max(n, 2)
    if p.kind == 'lds' and p.op.startswith('ds_write') and False: pass
    return n

def check_kernel(name, ins, labels):
    errs = []
    n = len(ins)
    pred = [[] for _ in range(n + 1)]
    for i, x in enumerate(ins):
        if x.op == 's_endpgm': continue
        if x.kind == 'branch':
            pred[labels[x.target]].append(i)
            if x.op == 's_branch': continue
        pred[i + 1].append(i)
    okw = ('s_cmp', 's_andn2_b32', 's_sub_u32', 's_or_b64', 's_and_b64', 's_bitcmp')
    noscc = ('s_mov', 's_nop', 's_barrier', 's_mul_i32', 's_cselect', 's_setprio', 's_endpgm', 's_getreg', 's_movk')
    for ci, c in enumerate(ins):
        if c.op.startswith(('s_cbranch_scc', 's_cselect')):
            j = ci - 1
            while j >= 0 and not (ins[j].kind == 'salu' and not ins[j].op.startswith(noscc)): j -= 1
            if j >= 0 and not ins[j].op.startswith(okw): errs.append(f'{name}: line {c.ln} [{c.text}] takes SCC from line {ins[j].ln} [{ins[j].text}]')
    W = 13
    for ci, c in enumerate(ins):
        stack = [(p, 0) for p in pred[ci]]; seen = set()
        while stack:
            pi, d = stack.pop()
            if (pi, d) in seen: continue
            seen.add((pi, d))
            p = ins[pi]
            k = need(p, c)
            if k > d: errs.append(f'{name}: line {c.ln} [{c.text}] needs {k} states after line {p.ln} [{p.text}], has {d}')
            d2 = d + p.states
            if d2 < W: stack += [(q, d2) for q in pred[pi]]
    work = [(0, (), (), ())]; seen = set(); reported = set(); steps = 0
    while work:
        i, vm, lg, taken = work.pop()
        while i < n:
            steps += 1
            if steps > 3000000: errs.append(f'{name}: wait walk gave up'); return errs
            x = ins[i]
            if pred[i] != [i - 1]:
                key = (i, vm, lg)
                if key in seen: break
                seen.add(key)
            touch = x.rd | x.wr
            for q, nm in ((vm, 'vmcnt'), (lg, 'lgkmcnt')):
                for j in q:
                    pw = ins[j].wr
                    bad = pw & touch if not (x.kind == ins[j].kind and x.kind != 'smem') else pw & x.rd
                    if bad and (i, j) not in reported:
                        reported.add((i, j)); errs.append(f'{name}: line {x.ln} [{x.text}] touches {sorted(bad)[:3]} pending {nm} from line {ins[j].ln} [{ins[j].text}]')
            if x.kind == 'wait':
                if x.vm is not None: vm = vm[len(vm) - x.vm:] if x.vm and x.vm < len(vm) else (vm if x.vm else ())
                if x.lg is not None:
                    if any(ins[j].kind == 'smem' for j in lg): lg = lg if x.lg else ()
                    else: lg = lg[len(lg) - x.lg:] if x.lg and x.lg < len(lg) else (lg if x.lg else ())
            elif x.kind == 'vmem' and not x.op.startswith('buffer_inv'):
                vm = vm + (i,)
                if len(vm) > 63 and ('ovf', i) not in reported:
                    reported.add(('ovf', i)); errs.append(f'{name}: line {x.ln} more than 63 vmem outstanding')
            elif x.kind in ('lds', 'smem'): lg = lg + (i,)
            if x.op == 's_endpgm': break
            if x.kind == 'branch':
                t = labels[x.target]
                if x.op == 's_branch':
                    if t <= i and taken.count(i) >= 2: break
                    taken = taken + (i,); i = t; continue
                if t > i or taken.count(i) < 2: work.append((t, vm, lg, taken + (i,)))
            i += 1
    return errs

def check(text):
    errs = []
    for name, (ins, labels) in parse(text).items(): errs += check_kernel(name, ins, labels)
    return errs

if __name__ == '__main__':
    e = check(open(sys.argv[1]).read())
    for x in e[:60]: print(x)
    print(len(e), 'problems')
```

```python
import sys, math, struct

NAME = 'recurrent_scan__mha_block_cached__mixer_channel_mlp__prompt'
XN_OFF, ST_OFF, B1_OFF, CS_OFF = 0, 0x200000, 0x208000, 0x20A000
H_OFF, O_OFF, TS_OFF = 0x400000, 0x1000000, 0x2000000
H_SIZE, O_SIZE = 128 * 56 * 1024, 128 * 128 * 1024
def f2u(x): return struct.unpack('<I', struct.pack('<f', x))[0]
LOG2E = 1.4426950408889634

class E:
    def __init__(self): self.l, self.vml = [], []
    def __call__(self, s):
        for x in s.strip().split('\n'):
            x = x.strip()
            if x: self.l.append(x if x.endswith(':') or x.startswith('.') else '    ' + x)
    def vm(self, s, tag=None): self(s); self.vml.append(tag)
    def vmn(self, *tags):
        last = max(i for i, t in enumerate(self.vml) if t in tags)
        return len(self.vml) - 1 - last
    def vmwait(self, *tags, extra=''): self(f's_waitcnt vmcnt({min(63, self.vmn(*tags))}){extra}')
    def put(self, it):
        if callable(it): it()
        elif isinstance(it, tuple): self.vm(*it)
        else: self(it)
    def stream(self, mf, gaps):
        for i, m in enumerate(mf):
            self(m)
            for it in gaps.get(i, ()): self.put(it)
    def text(self): return '\n'.join(self.l) + '\n'

def R(c, b, n=4): return f'{c}[{b}:{b+n-1}]'
def mfma(d, a, b, c): return f'v_mfma_f32_16x16x32_bf16 {d}, {a}, {b}, {c}'

def srd(e, d, base, off, size):
    e(f's_add_u32 s{d}, s{base}, {off}\ns_addc_u32 s{d+1}, s{base+1}, 0\ns_mov_b32 s{d+2}, {size}\ns_mov_b32 s{d+3}, 0x20000')

def kdesc(name, vgpr, accum, sgpr=64):
    return f'''.p2align 6
.amdhsa_kernel {name}
  .amdhsa_next_free_vgpr {vgpr}
  .amdhsa_next_free_sgpr {sgpr}
  .amdhsa_accum_offset {accum}
  .amdhsa_group_segment_fixed_size 0
  .amdhsa_kernarg_size 104
  .amdhsa_user_sgpr_count 2
  .amdhsa_user_sgpr_kernarg_segment_ptr 1
  .amdhsa_system_sgpr_workgroup_id_x 1
.end_amdhsa_kernel
'''
def khead(e, name): e(f'.globl {name}\n.p2align 8\n.type {name},@function\n{name}:')

def stamp(e, opt, k):
    if opt.get('ts'): e(f's_memtime s[{64+2*k}:{65+2*k}]')
def stamp_flush(e, opt, n, ws, slot):
    if not opt.get('ts'): return
    e(f's_memrealtime s[{64+2*n}:{65+2*n}]\ns_waitcnt lgkmcnt(0)')
    srd(e, 96, ws, TS_OFF + slot * 0x20000, 0x20000)
    e('v_lshrrev_b32 v2, 6, v0\ns_lshl_b32 s3, s2, 2\nv_add_u32 v2, s3, v2\nv_lshlrev_b32 v2, 6, v2')
    for k in range(n + 2):
        e(f'v_mov_b32 v3, s{62+2*k}\nbuffer_store_dword v3, v2, s[96:99], 0 offen offset:{4*k}')
    e('s_waitcnt vmcnt(0)')

def red32(e, v, t):
    for m in ('quad_perm:[1,0,3,2]', 'quad_perm:[2,3,0,1]', 'row_half_mirror', 'row_mirror'):
        e(f's_nop 1\nv_add_f32_dpp v{v}, v{v}, v{v} {m} row_mask:0xf bank_mask:0xf')
    e(f'v_mov_b32 v{t}, v{v}\ns_nop 1\nv_permlane16_swap_b32 v{v}, v{t}\ns_nop 1\nv_add_f32 v{v}, v{v}, v{t}')
def rbf(e, v): e(f'v_cvt_pk_bf16_f32 v{v}, v{v}, v{v}\nv_and_b32 v{v}, 0xffff0000, v{v}')

def ln_stats(e, X, m, sd, t, t2):
    e(f'v_add_f32 v{m}, v{X}, v{X+1}')
    for i in range(2, 16): e(f'v_add_f32 v{m}, v{m}, v{X+i}')
    red32(e, m, t)
    e(f'v_mul_f32 v{m}, {f2u(1/512):#x}, v{m}')
    e(f'v_sub_f32 v{t2}, v{X}, v{m}\nv_mul_f32 v{sd}, v{t2}, v{t2}')
    for i in range(1, 16): e(f'v_sub_f32 v{t2}, v{X+i}, v{m}\nv_fmac_f32 v{sd}, v{t2}, v{t2}')
    red32(e, sd, t)
    e(f'v_mul_f32 v{sd}, {f2u(1/512):#x}, v{sd}')
    rbf(e, sd)
    e(f'v_add_f32 v{sd}, {f2u(1e-5):#x}, v{sd}')
    rbf(e, sd)
    e(f'v_sqrt_f32 v{sd}, v{sd}\ns_nop 0')
    rbf(e, sd)
    rbf(e, m)

def k1(e, opt):
    khead(e, 'prep_kernel')
    e('''s_cmp_ge_u32 s2, 284
    s_cbranch_scc1 K1_END
    s_load_dwordx2 s[4:5], s[0:1], 0
    s_load_dwordx4 s[8:11], s[0:1], 48
    s_load_dwordx2 s[6:7], s[0:1], 96
    s_waitcnt lgkmcnt(0)''')
    srd(e, 16, 6, 0, 0x400000)
    e('s_cmp_ge_u32 s2, 256\ns_cbranch_scc1 K1_COL')
    srd(e, 12, 4, 0, 0x200000)
    e('''v_lshrrev_b32 v1, 5, v0
    s_lshl_b32 s3, s2, 3
    v_add_u32 v1, s3, v1
    v_and_b32 v2, 31, v0
    v_lshlrev_b32 v3, 10, v1
    v_lshl_add_u32 v3, v2, 4, v3
    buffer_load_dwordx4 v[8:11], v3, s[12:15], 0 offen
    buffer_load_dwordx4 v[12:15], v3, s[12:15], 0 offen offset:512
    v_lshrrev_b32 v4, 4, v1
    v_lshlrev_b32 v4, 14, v4
    v_lshrrev_b32 v5, 2, v2
    v_lshl_add_u32 v4, v5, 10, v4
    v_and_b32 v5, 3, v2
    v_lshl_add_u32 v4, v5, 8, v4
    v_and_b32 v5, 15, v1
    v_lshl_add_u32 v4, v5, 4, v4
    v_add_u32 v5, 0x2000, v4
    v_lshlrev_b32 v6, 4, v1
    s_waitcnt vmcnt(0)''')
    X = 16
    def unpack():
        for i in range(8): e(f'v_lshlrev_b32 v{X+2*i}, 16, v{8+i}\nv_and_b32 v{X+2*i+1}, 0xffff0000, v{8+i}')
    unpack()
    ln_stats(e, X, 32, 33, 34, 35)
    e('v_rcp_f32 v33, v33')
    for i in range(16): e(f'v_sub_f32 v{X+i}, v{X+i}, v32')
    for i in range(8): e(f'v_cvt_pk_bf16_f32 v{8+i}, v{X+2*i}, v{X+2*i+1}')
    unpack()
    for i in range(16): e(f'v_mul_f32 v{X+i}, v{X+i}, v33')
    for i in range(8): e(f'v_cvt_pk_bf16_f32 v{8+i}, v{X+2*i}, v{X+2*i+1}')
    e('buffer_store_dwordx4 v[8:11], v4, s[16:19], 0 offen\nbuffer_store_dwordx4 v[12:15], v5, s[16:19], 0 offen')
    unpack()
    ln_stats(e, X, 38, 37, 34, 35)
    e(f'''v_rcp_f32 v36, v37
    v_mov_b32 v39, 0
    v_cmp_eq_u32 vcc, 0, v2
    s_mov_b32 s3, {ST_OFF}
    s_and_saveexec_b64 s[20:21], vcc
    buffer_store_dwordx4 v[36:39], v6, s[16:19], s3 offen
    s_waitcnt vmcnt(0)
    s_endpgm
    K1_COL:
    s_sub_u32 s3, s2, 256
    s_lshl_b32 s22, s3, 7''')
    srd(e, 12, 8, 0, 512 * 3584)
    srd(e, 24, 10, 0, 3584)
    e('''v_lshrrev_b32 v1, 3, v0
    v_and_b32 v2, 7, v0
    v_mul_u32_u24 v3, 3584, v1
    v_lshl_add_u32 v3, v2, 4, v3
    v_add_u32 v3, s22, v3
    v_lshlrev_b32 v4, 1, v0
    buffer_load_ushort v6, v4, s[24:27], s22 offen''')
    for i in range(16):
        e(f's_mov_b32 s23, {i*32*3584}\nbuffer_load_dwordx4 {R("v",16+4*i)}, v3, s[12:15], s23 offen')
    for j in range(8): e(f'v_mov_b32 v{8+j}, 0')
    for i in range(16):
        e(f's_waitcnt vmcnt({15-i})')
        for j in range(4):
            e(f'v_lshlrev_b32 v5, 16, v{16+4*i+j}\nv_add_f32 v{8+2*j}, v{8+2*j}, v5')
            e(f'v_and_b32 v5, 0xffff0000, v{16+4*i+j}\nv_add_f32 v{9+2*j}, v{9+2*j}, v5')
    e('''v_lshlrev_b32 v5, 5, v0
    ds_write_b128 v5, v[8:11]
    ds_write_b128 v5, v[12:15] offset:16
    s_waitcnt lgkmcnt(0)
    s_barrier
    v_cmp_gt_u32 vcc, 64, v0
    s_nop 0
    s_and_saveexec_b64 s[20:21], vcc
    s_cbranch_execz K1_END
    v_lshlrev_b32 v5, 2, v0''')
    for r in range(0, 32, 8):
        for k in range(8): e(f'ds_read_b32 v{16+r+k}, v5 offset:{(r+k)*256}')
        e('s_waitcnt lgkmcnt(0)')
    for r in range(1, 32): e(f'v_add_f32 v16, v16, v{16+r}')
    e(f'''v_lshlrev_b32 v6, 16, v6
    s_lshl_b32 s22, s3, 8
    s_add_u32 s23, s22, {B1_OFF}
    s_add_u32 s22, s22, {CS_OFF}
    buffer_store_dword v6, v5, s[16:19], s23 offen
    buffer_store_dword v16, v5, s[16:19], s22 offen
    s_waitcnt vmcnt(0)
    K1_END:
    s_endpgm''')
    return kdesc('prep_kernel', 80, 80)
```

```python
import sys, math
sys.path.insert(0, 'dev')
from gen_base import *

H_OFF, WOP_OFF, O_OFF, W2P_OFF, TS_OFF = 0x400000, 0xC00000, 0x1000000, 0x2000000, 0x2400000
FL_OFF = 0x300000
H_SIZE, W2P_SIZE, WS_SIZE = 128 * 56 * 1024, 8 * 56 * 4096, 0x2400000
NSTAMP = 11

TSETS = {'a': 'start load0 qproj epi1 qk0 loop pvlast drain wait o1st main'.split(),
         'b': 'start qk0 it0 mid loop pvlast drain sent wait o1st main'.split()}
def stamp(e, opt, name):
    if opt.get('ts') and name in TSETS[opt['ts']]:
        k = TSETS[opt['ts']].index(name)
        e(f's_memtime s[{64+2*k}:{65+2*k}]')

def k2(e, opt):
    e.vml = []
    khead(e, 'attn_kernel')
    SK, SV, SWQ, SW1, SWS, SH, SC, SD, SDBG = 4, 8, 12, 16, 20, 24, 28, 32, 40
    SX, SOUT, SB2 = 12, 16, 24
    pX, pK, pV, pWQ, pWO, pW1, pW2, pB2, pOUT, pDBG, pWS = 36, 38, 40, 42, 44, 48, 52, 54, 56, 58, 60
    sC0, sC1, sFL = 46, 47, 50
    sHEAD, sW, sW1K, sW8K, sK, sV, sCNT, sT, sPASS, sXB, sQB, sMA, sMB, sTQ = range(88, 102)
    sCT, sRB, sWO, sOB = 38, 39, 48, 49
    ONES, KA, VA, KD, VD, IDX, L16 = 4, 8, 12, 20, 21, 22, 23
    S, CI, L, G, M2, P = 32, 48, 64, 80, 96, 128
    aO, aQ, aK, aV = 0, 128, 192, 224
    WQA, W1A, WQD, W1D, RS = 24, 28, 8, 9, 12
    AF, HA, QA = 32, 64, 128
    EB = 0x20000
    ORING = int(opt.get('oring', 5))
    ND = 6
    ST, sTO, sTS, sTZ = 28, 44, 45, 51
    TD, TV, WTV = 29, 30, 31
    MSC = '' if opt.get('mplain') else ' sc1'
    OSC = '' if opt.get('oplain') else ' sc1'
    MAXFLY = int(opt.get('maxfly', 40))
    def sr(b): return f's[{b}:{b+3}]'
    e(f'''s_cmp_ge_u32 s2, 256
    s_cbranch_scc1 K2_END
    s_mov_b32 s{sPASS}, 0
    K2_TOP:
    s_load_dwordx16 s[36:51], s[0:1], 0
    s_load_dwordx8 s[52:59], s[0:1], 64
    s_load_dwordx2 s[60:61], s[0:1], 96''')
    if opt.get('ts'): e('s_memrealtime s[62:63]')
    stamp(e, opt, 'start')
    e(f'''s_and_b32 s{sHEAD}, s2, 7
    s_lshl_b32 s{sHEAD}, s{sHEAD}, 2
    s_lshr_b32 s{sT}, s2, 3
    s_and_b32 s{sT}, s{sT}, 3
    s_add_u32 s{sHEAD}, s{sHEAD}, s{sT}
    v_lshrrev_b32 v1, 6, v0
    v_and_b32 v2, 63, v0
    v_readfirstlane_b32 s{sW}, v1
    v_lshlrev_b32 v{L16}, 4, v2
    s_lshl_b32 s{sW1K}, s{sW}, 10
    s_lshl_b32 s{sW8K}, s{sW}, 13
    s_lshr_b32 s{sQB}, s2, 5
    s_lshl_b32 s{sQB}, s{sQB}, 4
    s_lshl_b32 s{sT}, s{sW}, 2
    s_add_u32 s{sQB}, s{sQB}, s{sT}
    s_lshl_b32 s{sXB}, s{sQB}, 14
    s_waitcnt lgkmcnt(0)''')
    srd(e, SWS, pWS, 0, WS_SIZE)
    e(f'''s_lshl_b32 s{sFL}, s{sHEAD}, 3
    s_lshr_b32 s{sT}, s2, 5
    s_add_u32 s{sFL}, s{sFL}, s{sT}
    s_lshl_b32 s{sFL}, s{sFL}, 8
    s_add_u32 s{sFL}, s{sFL}, {FL_OFF}
    v_lshlrev_b32 v4, 2, v2
    v_mov_b32 v5, 0
    s_cmp_lg_u32 s{sPASS}, 0
    s_cbranch_scc1 K2_NOZ
    buffer_store_dword v5, v4, {sr(SWS)}, s{sFL} offen sc1
    K2_NOZ:''')
    e(f's_lshl_b32 s{sT}, s{sHEAD}, 7')
    srd(e, SW1, pW1, f's{sT}', 0)
    e(f'''s_sub_u32 s{SW1+2}, {512*3584}, s{sT}
    s_cmp_lt_u32 s{sHEAD}, 28
    s_cselect_b32 s{SW1+2}, s{SW1+2}, 0''')
    e(f'''v_lshrrev_b32 v1, 4, v2
    v_and_b32 v3, 15, v2
    s_lshl_b32 s{sT}, s{sQB}, 8
    s_add_u32 s{sT}, s{sT}, {ST_OFF}
    v_lshlrev_b32 v10, 4, v3
    v_lshlrev_b32 v11, 4, v1''')
    for qb in range(4): e.vm(f'buffer_load_dwordx4 {R("v",128+4*qb)}, v10, {sr(SWS)}, s{sT} offen offset:{256*qb}', 'small')
    e(f's_lshl_b32 s{sT}, s{sHEAD}, 8\ns_add_u32 s{sCNT}, s{sT}, {B1_OFF}\ns_add_u32 s{sT}, s{sT}, {CS_OFF}')
    for fb in range(4): e.vm(f'buffer_load_dwordx4 {R("v",144+4*fb)}, v11, {sr(SWS)}, s{sCNT} offen offset:{64*fb}', 'small')
    for fb in range(4): e.vm(f'buffer_load_dwordx4 {R("v",160+4*fb)}, v11, {sr(SWS)}, s{sT} offen offset:{64*fb}', 'small')
    e(f'''v_lshrrev_b32 v10, 3, v2
    s_lshl_b32 s{sT}, s{sW}, 3
    v_add_u32 v10, s{sT}, v10
    v_mul_u32_u24 v10, 3584, v10
    v_and_b32 v11, 1, v1
    s_and_b32 s{sT}, s{sW}, 1
    s_lshl_b32 s{sT}, s{sT}, 1
    v_or_b32 v11, s{sT}, v11
    v_lshlrev_b32 v11, 1, v11
    v_and_b32 v16, 7, v2
    v_xor_b32 v11, v11, v16
    v_lshl_add_u32 v{W1D}, v11, 4, v10''')
    def w1dma(cc, t, tag):
        return [f's_add_u32 m0, s{sW1K}, {EB + (cc & 1) * 16384 + t * 4096}', f's_mov_b32 s{sT}, {(128*cc + 32*t) * 3584}',
                (f'buffer_load_dwordx4 v{W1D}, {sr(SW1)}, s{sT} offen lds', tag)]
    def wqdma(cc, t, tag):
        return [f's_add_u32 m0, s{sW1K}, {cc * 32768 + t * 4096}', f's_mov_b32 s{sT}, {(128*cc + 16*t) * 8192}',
                (f'buffer_load_dwordx4 v{WQD}, {sr(SWQ)}, s{sT} offen lds', tag)]
    def xnload(cc, qb, ks):
        pre = [f's_add_u32 s{sCNT}, s{sXB}, {qb * 16384 + cc * 4096}'] if ks == 0 else []
        return pre + [(f'buffer_load_dwordx4 {R("a", 64*cc + 16*qb + 4*ks)}, v{L16}, {sr(SWS)}, s{sCNT} offen offset:{1024*ks}', f'xn{cc}_{qb}')]
    def kvdma(lds, vd, srd_, so):
        out = []
        for t in range(8):
            grp, j = divmod(t, 4)
            it = [f's_add_u32 m0, s{sW8K}, {lds + grp * 4096}'] if j == 0 else []
            it.append((f'buffer_load_dwordx4 v{vd}, {sr(srd_)}, s{so} offen offset:{1024*j} lds', 'kv'))
            if j == 3: it.append(f's_add_u32 s{so}, s{so}, {4096 if grp == 0 else 28672}')
            out.append(it)
        return out
    def kdma(slot): return kvdma(slot * 32768, KD, SK, sK)
    def vdma(slot): return kvdma(65536 + slot * 32768, VD, SV, sV)
    def run(items):
        for it in items:
            if isinstance(it, tuple) and e.l[-1].strip().startswith('s_add_u32 m0'): e('s_nop 0')
            e.put(it)
    for t in range(4): run(w1dma(0, t, 'w0'))
    for qb in range(4):
        for ks in range(4): run(xnload(0, qb, ks))
    e(f's_lshl_b32 s{sT}, s{sHEAD}, 8')
    srd(e, SWQ, pWQ, f's{sT}', 0)
    e(f'''s_sub_u32 s{SWQ+2}, {512*8192}, s{sT}
    s_lshl_b32 s{sT}, s{sW}, 2
    v_add_u32 v10, s{sT}, v1
    v_lshlrev_b32 v11, 2, v1
    v_xor_b32 v11, v11, v3
    v_lshlrev_b32 v11, 4, v11
    v_lshl_add_u32 v{WQD}, v10, 13, v11''')
    for t in range(8): run(wqdma(0, t, 'w0'))
    for t in range(4): run(w1dma(1, t, 'w1'))
    for t in range(8): run(wqdma(1, t, 'w1'))
    e(f's_lshl_b32 s{sT}, s{sHEAD}, 19')
    srd(e, SK, pK, f's{sT}', 0x80000)
    srd(e, SV, pV, f's{sT}', 0x80000)
    srd(e, SH, pWS, H_OFF, H_SIZE)
    e(f's_cmp_lt_u32 s{sHEAD}, 28\ns_cselect_b32 s{SH+2}, s{SH+2}, 0')
    srd(e, SDBG, pDBG, 0, 256)
    e.vm(f'buffer_load_dword v4, v{L16}, {sr(SDBG)}, 0 offen sc1', 'touch')
    srd(e, SD, pWS, W2P_OFF, W2P_SIZE)
    e(f's_cmp_lt_u32 s2, 112\ns_cselect_b32 s{SD+2}, s{SD+2}, 0')
    e(f's_mov_b32 s{sTQ}, s{sHEAD}\ns_lshr_b32 s{sCT}, s2, 5')
    e(f'''s_lshr_b32 s{sT}, s{sW}, 1
    s_lshl_b32 s{sMB}, s{sTQ}, 1
    s_add_u32 s{sMB}, s{sMB}, s{sT}
    s_mul_i32 s{sMB}, s{sMB}, {56*2048}
    s_add_u32 s{sMB}, s{sMB}, {H_OFF}
    s_and_b32 s{sT}, s{sW}, 1
    s_lshl_b32 s{sT}, s{sT}, 11
    s_mul_i32 s{sMA}, s{sCT}, {56*4096}
    s_add_u32 s{sMA}, s{sMA}, s{sT}
    s_add_u32 s{sMA}, s{sMA}, {W2P_OFF}
    s_lshl_b32 s{sT}, s{sW}, 17
    s_lshl_b32 s{sWO}, s{sCT}, 19
    s_add_u32 s{sWO}, s{sWO}, s{sT}
    s_add_u32 s{sWO}, s{sWO}, {WOP_OFF}
    s_lshl_b32 s{sOB}, s{sTQ}, 19
    s_add_u32 s{sOB}, s{sOB}, s{sT}
    s_add_u32 s{sOB}, s{sOB}, {O_OFF}''')
    e(f'''v_xor_b32 v11, v10, v3
    v_lshlrev_b32 v11, 4, v11
    v_lshl_add_u32 v{KD}, v1, 8, v11
    v_and_b32 v11, 7, v10
    v_lshlrev_b32 v11, 1, v11
    v_xor_b32 v11, v11, v3
    v_lshlrev_b32 v11, 4, v11
    v_lshl_add_u32 v{VD}, v1, 8, v11
    s_mov_b32 s{sK}, s{sW8K}
    s_mov_b32 s{sV}, s{sW8K}''')
    e(f'''v_lshrrev_b32 v10, 2, v3
    v_and_b32 v11, 3, v2
    v_lshl_add_u32 v16, v1, 3, v10''')
    for ds in range(4):
        e(f'v_xor_b32 v17, {ds}, v10\nv_lshl_add_u32 v17, v17, 2, v11\nv_lshlrev_b32 v17, 4, v17\nv_lshl_add_u32 v{WQA+ds}, v16, 8, v17')
    e(f'''v_lshrrev_b32 v17, 1, v10
    v_and_b32 v18, 1, v1
    v_lshl_add_u32 v17, v18, 1, v17
    v_lshlrev_b32 v18, 7, v16
    v_lshl_add_u32 v18, v11, 3, v18
    v_add_u32 v18, {EB}, v18''')
    for fb in range(4): e(f'v_xor_b32 v19, {fb}, v17\nv_lshl_add_u32 v{W1A+fb}, v19, 5, v18')
    RLD, RLA = 10, 11
    e(f'''v_lshrrev_b32 v16, 3, v2
    v_and_b32 v17, 7, v2
    v_lshlrev_b32 v17, 4, v17
    v_lshl_add_u32 v{RLD}, v16, 10, v17
    v_lshrrev_b32 v16, 2, v2
    v_lshlrev_b32 v17, 4, v11
    v_lshl_add_u32 v16, v16, 7, v17
    s_add_u32 s{sT}, s{sW8K}, {EB}
    v_add_u32 v{RLA}, s{sT}, v16''')
    e.vmwait('small')
    for fb in range(4):
        for qb in range(4):
            for r in range(4):
                d = HA + 16 * fb + 4 * qb + r
                e(f'v_mul_f32 v{d}, v{144+4*fb+r}, v{128+4*qb+1}')
                e(f'v_fma_f32 v{d}, -v{128+4*qb+2}, v{160+4*fb+r}, v{d}')
    for qb in range(4): e(f'v_mov_b32 v{RS+qb}, v{128+4*qb}')

    def aread(n):
        cc, blk = divmod(n, 12)
        out = []
        for ks in range(4):
            for u in range(2):
                d = AF + 16 * (n & 1) + 4 * ks + 2 * u
                if blk < 4: out.append(f'ds_read_b64_tr_b16 v[{d}:{d+1}], v{W1A+blk} offset:{(cc&1)*16384 + (32*ks+4*u)*128}')
                else:
                    ds, hb = divmod(blk - 4, 2)
                    out.append(f'ds_read_b64_tr_b16 v[{d}:{d+1}], v{WQA+ds} offset:{(cc&1)*32768 + (32*ks+4*u)*256 + 8*hb}')
        return out
    e.vmwait('w0')
    e('s_barrier')
    stamp(e, opt, 'load0')
    for x in aread(0): e(x)
    e('s_waitcnt lgkmcnt(0)')
    e.vmwait('xn0_0')
    def rldma(which, n):
        pre = []
        if n == 0:
            p, sz = (pWO, 4096 * 1024) if which == 0 else (pW2, 1792 * 1024)
            pre = [f's_mov_b32 s{SC}, s{p}', f's_mov_b32 s{SC+1}, s{p+1}', f's_mov_b32 s{SC+2}, {sz}', f's_mov_b32 s{SC+3}, 0x20000']
        return pre + [f's_add_u32 m0, s{sW8K}, {EB + which * 4096 + n * 1024}', f's_add_u32 s{sT}, s{sC0}, {n * 8192}',
                      (f'buffer_load_dwordx4 v{RLD}, {sr(SC)}, s{sT} offen lds', 'rl')]
    e(f'''s_lshr_b32 s{sC0}, s2, 1
    s_lshl_b32 s{sC0}, s{sC0}, 15
    s_and_b32 s{sC1}, s2, 1
    s_lshl_b32 s{sC1}, s{sC1}, 2
    s_add_u32 s{sC1}, s{sC1}, s{sW}
    s_lshl_b32 s{sT}, s{sC1}, 7
    s_add_u32 s{sC0}, s{sC0}, s{sT}''')
    bg = []
    for qb in range(4):
        for ks in range(4): bg.append((0, xnload(1, qb, ks)))
    bg += [(0, wqdma(2, t, 'w2')) for t in range(8)]
    for qb in range(4):
        for ks in range(4): bg.append((5, xnload(2, qb, ks)))
    bg += [(11, w1dma(2, t, 'w2')) for t in range(4)] + [(11, x) for x in kdma(0)]
    bg += [(12, wqdma(3, t, 'w3')) for t in range(8)]
    for qb in range(4):
        for ks in range(4): bg.append((12, xnload(3, qb, ks)))
    bg += [(23, w1dma(3, t, 'w3')) for t in range(4)] + [(23, x) for x in kdma(1)]
    bg += [(35, x) for x in vdma(0)]
    bg += [(40, rldma(wh, n)) for wh in range(2) for n in range(4)]
    for n in range(48):
        cc, blk = divmod(n, 12)
        mf, gaps = [], {i: [] for i in range(16)}
        acc = HA + 16 * blk if blk < 4 else QA + 16 * (blk - 4)
        for qb in range(4):
            for ks in range(4):
                d = R('v', acc + 4 * qb)
                c = '0' if (blk >= 4 and cc == 0 and ks == 0) else d
                mf.append(mfma(d, R('v', AF + 16 * (n & 1) + 4 * ks), R('a', 64 * cc + 16 * qb + 4 * ks), c))
        first = 0
        if blk == 11 and cc < 3:
            gaps[0].append(lambda cc=cc: e.vmwait(f'w{cc+1}'))
            gaps[0].append('s_barrier')
            first = 1
            if cc == 1:
                for ds in range(4): gaps[12 + ds].append(f'v_add_u32 v{WQA+ds}, 0x10000, v{WQA+ds}')
        if n == 40: gaps[0].append('s_barrier')
        if n < 47:
            for i, x in enumerate(aread(n + 1)): gaps[first + i].append(x)
        if blk == 0:
            for qb in range(1, 4): gaps[4 * qb - 1].insert(0, lambda cc=cc, qb=qb: e.vmwait(f'xn{cc}_{qb}'))
        for slot in (9, 11, 13, 15):
            if bg and bg[0][0] <= n and not (blk == 0 and slot == 11):
                items = bg.pop(0)[1]
                k = [i for i, it in enumerate(items) if isinstance(it, tuple)][0]
                gaps[slot - 1] = items[:k] + gaps[slot - 1]
                gaps[slot] = gaps[slot] + items[k:]
        if n < 47:
            w = [lambda: e('s_waitcnt lgkmcnt(0)')]
            if blk == 11: w = [lambda cc=cc: e.vmwait(f'xn{cc+1}_0', extra=' lgkmcnt(0)')]
            gaps[15] = w + gaps[15]
        e.stream(mf, gaps)
    assert not bg
    stamp(e, opt, 'qproj')
    c0 = -2 * math.sqrt(2 / math.pi) * LOG2E
    e(f's_mov_b32 s{sCNT}, {f2u(c0 * 0.044715):#x}\nv_mov_b32 v16, {f2u(c0):#x}')
    e(f's_mul_i32 s{sT}, s{sQB}, {56*1024}\ns_lshl_b32 s{sXB}, s{sHEAD}, 12\ns_add_u32 s{sT}, s{sT}, s{sXB}')
    for qb in range(4):
        for t in range(2):
            us = [HA + 16 * (2 * t + h) + 4 * qb + r for h in range(2) for r in range(4)]
            tm = [32 + 8 * t + i for i in range(8)]
            for u in us: e(f'v_mul_f32 v{u}, v{u}, v{RS+qb}')
            for u, x in zip(us, tm): e(f'v_mul_f32 v{x}, v{u}, v{u}')
            for u, x in zip(us, tm): e(f'v_fma_f32 v{x}, v{x}, s{sCNT}, v16')
            for u, x in zip(us, tm): e(f'v_mul_f32 v{x}, v{x}, v{u}')
            for u, x in zip(us, tm): e(f'v_exp_f32 v{x}, v{x}')
            for u, x in zip(us, tm): e(f'v_add_f32 v{x}, 1.0, v{x}')
            for u, x in zip(us, tm): e(f'v_rcp_f32 v{x}, v{x}')
            for u, x in zip(us, tm): e(f'v_mul_f32 v{x}, v{x}, v{u}')
            o = 48 + 8 * (qb & 1) + 4 * t
            for i in range(4): e(f'v_cvt_pk_bf16_f32 v{o+i}, v{tm[2*i]}, v{tm[2*i+1]}')
            e.vm(f'buffer_store_dwordx4 {R("v",o)}, v{L16}, {sr(SH)}, s{sT} offen offset:{2048*t + 1024*(qb&1)} sc1', 'hst')
        if qb == 1:
            e(f's_add_u32 s{sT}, s{sT}, {56*2048}')
            e.vmwait('rl')
            for wh in range(2):
                for nb in range(4):
                    for u in range(2):
                        d = 16 * wh + 4 * nb + 2 * u
                        e(f'ds_read_b64_tr_b16 a[{d}:{d+1}], v{RLA} offset:{wh*4096 + u*2048 + 64*(nb>>1) + 8*(nb&1)}')
                e('s_waitcnt lgkmcnt(0)')
    e(f'''s_lshr_b32 s{sT}, s2, 1
    s_lshl_b32 s{sT}, s{sT}, 12
    s_lshl_b32 s{sC0}, s{sC1}, 19
    s_add_u32 s{sC0}, s{sC0}, s{sT}
    s_add_u32 s{sC0}, s{sC0}, {WOP_OFF}
    s_mul_i32 s{sC1}, s{sC1}, {56*4096}
    s_add_u32 s{sC1}, s{sC1}, s{sT}''')
    for nb in range(4): e.vm(f'buffer_store_dwordx4 {R("a", 4*nb)}, v{L16}, {sr(SWS)}, s{sC0} offen offset:{1024*nb} sc1', 'hst')
    for nb in range(4): e.vm(f'buffer_store_dwordx4 {R("a", 16+4*nb)}, v{L16}, {sr(SD)}, s{sC1} offen offset:{1024*nb} sc1', 'hst')
    e(f's_mov_b32 s{sT}, {f2u(LOG2E / math.sqrt(128)):#x}')
    for ds in range(4):
        for qb in range(4):
            src = [QA + 16 * (2 * ds + hb) + 4 * qb + r for hb in range(2) for r in range(4)]
            for u in src: e(f'v_mul_f32 v{u}, s{sT}, v{u}')
            for i in range(4): e(f'v_cvt_pk_bf16_f32 v{src[i]}, v{src[2*i]}, v{src[2*i+1]}')
            for i in range(4): e(f'v_accvgpr_write_b32 a{aQ + 16*qb + 4*ds + i}, v{src[i]}')
    e(f'''v_lshrrev_b32 v24, 2, v3
    v_and_b32 v25, 3, v3
    v_lshlrev_b32 v25, 8, v25
    v_lshl_add_u32 v25, v24, 13, v25''')
    for ds in range(4):
        e(f'v_add_u32 v24, {4*ds}, v1\nv_xor_b32 v24, v24, v3\nv_lshl_add_u32 v{KA+ds}, v24, 4, v25')
    e(f'''v_lshrrev_b32 v24, 2, v2
    v_and_b32 v25, 7, v24
    v_and_b32 v26, 3, v2
    v_and_b32 v24, 3, v24
    v_lshlrev_b32 v24, 8, v24
    v_lshl_add_u32 v24, v1, 13, v24
    v_lshl_add_u32 v24, v26, 3, v24
    v_add_u32 v24, 0x10000, v24''')
    for db in range(8): e(f'v_xor_b32 v26, {db}, v25\nv_lshl_add_u32 v{VA+db}, v26, 5, v24')
    e(f'''v_and_b32 v24, 2, v2
    v_cmp_eq_u32 vcc, 0, v24
    v_mov_b32 v25, 0x3f803f80
    v_and_b32 v24, 1, v2
    v_cndmask_b32 v{ONES}, 0, v25, vcc
    v_cmp_eq_u32 vcc, 0, v24
    v_mov_b32 v{ONES+1}, v{ONES}
    v_mov_b32 v{ONES+2}, v{ONES}
    v_mov_b32 v{ONES+3}, v{ONES}
    v_mov_b32 v25, 0x44444444
    v_mov_b32 v{IDX}, 0xeeeeeeee
    v_cndmask_b32 v{IDX}, v{IDX}, v25, vcc''')
    for i in range(32): e(f'v_mov_b32 v{L+i}, 0')

    def kread(slot, kb, buf):
        return [f'ds_read_b128 {R("a", aK + 16*buf + 4*ds)}, v{KA+ds} offset:{slot*32768 + kb*1024}' for ds in range(4)]
    def vread(slot, db, buf):
        return [f'ds_read_b64_tr_b16 a[{aV+16*buf+4*ks+2*u}:{aV+16*buf+4*ks+2*u+1}], v{VA+db} offset:{slot*32768 + (2*ks+u)*1024}'
                for ks in range(4) for u in range(2)]
    def qk(buf, qb, sb, c):
        d = R('v', S + 4 * sb)
        return [mfma(d, R('a', aK + 16 * buf + 4 * ds), R('a', aQ + 16 * qb + 4 * ds), c if ds == 0 else d) for ds in range(4)]
    def rowmax_to_ci(src):
        for sw in ('v_permlane32_swap_b32', 'v_permlane16_swap_b32'):
            for qb in range(4): e(f'v_mov_b32 v{28+qb}, v{src+qb}')
            e('s_nop 0')
            for qb in range(4): e(f'{sw} v{src+qb}, v{28+qb}')
            e('s_nop 0')
            for qb in range(4): e(f'v_max_f32 v{src+qb}, v{src+qb}, v{28+qb}')
        for qb in range(4):
            for r in range(4): e(f'v_sub_f32 v{CI+4*qb+r}, 0, v{src+qb}')
    stamp(e, opt, 'epi1')
    e(f's_cmp_lg_u32 s{sPASS}, 0\ns_cbranch_scc1 K2_MAXP')
    for x in kread(0, 0, 0): e(x)
    e('s_waitcnt lgkmcnt(0)')
    for qb in range(4):
        for x in qk(0, qb, qb, '0'): e(x)
    e('s_nop 7')
    for qb in range(4): e(f'v_max3_f32 v{24+qb}, v{S+4*qb}, v{S+4*qb+1}, v{S+4*qb+2}')
    for qb in range(4): e(f'v_max_f32 v{24+qb}, v{24+qb}, v{S+4*qb+3}')
    rowmax_to_ci(24)
    e('K2_ATT:')
    e(f'''v_mov_b32 v24, 0
    v_mov_b32 v25, 1
    v_mov_b32 v26, 1
    s_lshr_b32 s{sT}, s2, 5
    s_lshl_b32 s{sT}, s{sT}, 5
    s_or_b32 s{sC0}, s{sPASS}, s{sW}''')
    e(f'''v_lshlrev_b32 v{TV}, 6, v2
    s_lshl_b32 s{sT}, s{sT}, 7
    s_mov_b32 s{ST}, s{SK}
    s_mov_b32 s{ST+1}, s{SK+1}
    s_mov_b32 s{ST+2}, 0x80000
    s_mov_b32 s{ST+3}, 0x20000
    s_mov_b32 s{sTZ}, 0x80000
    s_mov_b32 s{sTS}, 32768
    s_add_u32 s{sTO}, s{sT}, 65536
    s_cmp_eq_u32 s{sW}, 0
    s_cbranch_scc1 K2_TW
    s_mov_b32 s{ST}, s{SV}
    s_mov_b32 s{ST+1}, s{SV+1}
    s_add_u32 s{sTO}, s{sT}, 32768
    s_cmp_eq_u32 s{sW}, 1
    s_cbranch_scc1 K2_TW
    s_mov_b32 s{ST}, s{SWS}
    s_mov_b32 s{ST+1}, s{SWS+1}
    s_mov_b32 s{ST+2}, 0
    s_mov_b32 s{sTZ}, {WS_SIZE}
    s_mov_b32 s{sTS}, 16384
    s_and_b32 s{sT}, s{sTQ}, 3
    s_lshl_b32 s{sT}, s{sT}, 12
    s_add_u32 s{sTO}, s{sMA}, s{sT}
    s_sub_u32 s{sTO}, s{sTO}, {2048 + 32768 - 3 * 4096}
    s_cmp_eq_u32 s{sW}, 3
    s_cbranch_scc1 K2_TW
    s_mov_b32 s{sTS}, 8192
    s_lshl_b32 s{sT}, s{sCT}, 10
    s_add_u32 s{sTO}, s{sMB}, s{sT}
    s_sub_u32 s{sTO}, s{sTO}, {56 * 2048 + 16384 - 3 * 2048}
    v_lshrrev_b32 v27, 5, v2
    v_mul_u32_u24 v27, {56 * 2048}, v27
    v_and_b32 v{TV}, 31, v2
    v_lshl_add_u32 v{TV}, v{TV}, 5, v27
    K2_TW:
    v_lshrrev_b32 v27, 3, v2
    v_and_b32 v{WTV}, 7, v2
    v_lshlrev_b32 v{WTV}, 7, v{WTV}
    v_lshl_add_u32 v{WTV}, v27, 12, v{WTV}
    s_and_b32 s{sT}, s{sTQ}, 3
    s_lshl_b32 s{sT}, s{sT}, 10
    v_add_u32 v{WTV}, s{sT}, v{WTV}''')
    for i in range(2):
        e.vm(f'buffer_load_dword v{TD}, v{TV}, {sr(ST)}, s{sTO} offen sc1', 'touch')
        e(f's_add_u32 s{sTO}, s{sTO}, s{sTS}')

    def preg(par, qb, ks): return P + 64 * par + 16 * qb + 4 * ks
    def softmax_ops(gi, par):
        kb, qb = gi >> 2, gi & 3
        s = S + 4 * (gi & 3)
        p = preg(par, qb, kb >> 1) + 2 * (kb & 1)
        return ([f'v_exp_f32 v{s+r}, v{s+r}' for r in range(4)],
                [f'v_cvt_pk_bf16_f32 v{p+i}, v{s+2*i}, v{s+2*i+1}' for i in range(2)])
    def rowsum(par, sq, t): return f'v_smfmac_f32_16x16x64_bf16 {R("v", L+4*sq)}, {R("v", ONES)}, {R("v", preg(par, sq, 2*t), 8)}, v{IDX}'
    def m2loads(b):
        r = M2 + 16 * b
        return [(f'buffer_load_dwordx4 {R("v", r)}, v{L16}, {sr(SWS)}, s{sMA} offen{MSC}', f'm{b}'),
                (f'buffer_load_dwordx4 {R("v", r+8)}, v{L16}, {sr(SWS)}, s{sMB} offen{MSC}', f'm{b}'),
                (f'buffer_load_dwordx4 {R("v", r+4)}, v{L16}, {sr(SWS)}, s{sMA} offen offset:1024{MSC}', f'm{b}'),
                (f'buffer_load_dwordx4 {R("v", r+12)}, v{L16}, {sr(SWS)}, s{sMB} offen offset:1024{MSC}', f'm{b}')]
    m2adv = [f's_add_u32 s{sMA}, s{sMA}, 4096', f's_add_u32 s{sMB}, s{sMB}, 2048']
    def m2mfma(b):
        r = M2 + 16 * b
        return [mfma(R('v', G + 8 * a + 4 * q), R('v', r + 4 * a), R('v', r + 8 + 4 * q), R('v', G + 8 * a + 4 * q)) for a in range(2) for q in range(2)]
    def place(gaps, g, items):
        k = [i for i, it in enumerate(items) if isinstance(it, tuple)][0]
        for i, x in enumerate(items[:k]): gaps[g - k + i].insert(0, x)
        gaps[g].append(items[k])
        if g + 1 in gaps:
            for i, x in enumerate(items[k + 1:]): gaps[g + 1 + i].insert(0, x)
        else: gaps[g] += items[k + 1:]
    touch = [(f'buffer_load_dword v{TD}, v{TV}, {sr(ST)}, s{sTO} offen sc1', 'touch'), f's_add_u32 s{sTO}, s{sTO}, s{sTS}']
    def wotouch(i): return [f's_add_u32 s{sT}, s{sWO}, {32768 * i}', (f'buffer_load_dword v{TD}, v{WTV}, {sr(SWS)}, s{sT} offen sc1', 'touch')]

    def first_qk():
        p = 1
        dma = vdma(1)[:ND]
        for Q in range(8):
            mf, ex = [], []
            for qb in range(4):
                gi = 4 * Q + qb
                if gi >= 2: ex.append((len(mf), softmax_ops(gi - 2, 0)))
                mf += qk(Q & 1, qb, gi & 3, R('v', CI + 4 * qb))
            gaps = {i: [] for i in range(20)}
            reads = kread(0, Q + 1, (Q + 1) & 1) if Q < 7 else kread(1, 0, 0) + vread(0, 0, 0)
            for base, (xs, cs) in ex:
                for r in range(4): gaps[base + r].append(xs[r])
                gaps[base + 2].append(cs[0]); gaps[base + 4].append(cs[1])
            for i, x in enumerate(reads): gaps[1 + i].insert(0, x)
            gaps[15] += ['s_nop 0'] + gaps[16]
            if Q == 0: gaps[7].append('s_nop 0')
            if Q == 7:
                xs, cs = softmax_ops(30, 0)
                for it in dma:
                    k = [i for i, x in enumerate(it) if isinstance(x, tuple)][0]
                    gaps[15] += it[:k] + [xs.pop(0) if xs else 's_nop 0'] + it[k:]
                gaps[15] += xs + ['s_nop 0'] + cs
                gaps[0] = ['s_waitcnt vmcnt(0)', 's_barrier', f's_cmp_lg_u32 s{sC0}, 0', 's_cbranch_scc1 K2_SIG1', 's_mov_b64 exec, 1',
                           (f'buffer_atomic_add v26, v24, {sr(SDBG)}, 0 offen sc0', 'arr'), 's_mov_b64 exec, -1', 'K2_SIG1:'] + gaps[0]
            gaps[15].insert(0, 's_waitcnt lgkmcnt(0)')
            e.stream(mf, gaps)

    RG = [1, 1, 3, 7, 9, 9, 11, 15, 17, 17, 19, 23]
    def iteration(p, kind, tail=(), dma=None, nxt=None, cond=(), extra=None):
        if dma is None: dma = (vdma(1 - p) + kdma(p))[ND:]
        if nxt is None: nxt = vdma(p)[:ND]
        for Q in range(8):
            mf, ex = [], []
            for qb in range(4):
                gi = 4 * Q + qb
                base = len(mf)
                mf += qk(Q & 1, qb, gi & 3, R('v', CI + 4 * qb))
                o = R('a', aO + 16 * Q + 4 * qb)
                mf += [mfma(o, R('a', aV + 16 * (Q & 1) + 4 * ks), R('v', preg(p, qb, ks)), '0' if (kind == 'first' and ks == 0) else o) for ks in range(4)]
                ex.append((base, softmax_ops(31, p) if gi == 0 else softmax_ops(gi - 1, 1 - p)))
            m2 = kind != 'first' and Q & 1
            if m2: mf += m2mfma((Q >> 1) & 1)
            mf.append(rowsum(p, Q & 3, Q >> 2))
            last = len(mf) - 1
            gaps = {i: [] for i in range(len(mf))}
            if Q < 7: reads = kread(1 - p, Q + 1, (Q + 1) & 1) + vread(p, Q + 1, (Q + 1) & 1)
            else: reads = (kread(p, 0, 0) if kind != 'last' else []) + vread(1 - p, 0, 0)
            for g, x in zip(RG, reads): gaps[g].append(x)
            for base, (xs, cs) in ex:
                for r in range(4): gaps[base + 2 * r].append(xs[r])
                gaps[base + 3].append(cs[0]); gaps[base + 7].append(cs[1])
            slots = [5, 13, 21, 25, 29, 33 if m2 else 32]
            if not Q & 1 and (Q == 6 if kind == 'first' else (kind != 'last' or Q < 6)):
                ml = m2loads(1 - ((Q >> 1) & 1))
                for g, x in zip((5, 13, 21), ml): gaps[g].append(x)
                place(gaps, 29, [ml[3]] + m2adv)
                slots = [25]
            if Q == 6 and kind != 'last': place(gaps, 32, touch)
            src = nxt if Q == 7 else dma
            if extra and Q in extra: place(gaps, slots.pop(0), extra[Q])
            for g in slots:
                if src: place(gaps, g, src.pop(0))
            if m2: gaps[31].insert(0, lambda b=(Q >> 1) & 1: e.vmwait(f'm{b}'))
            if Q == 5 and cond:
                gaps[5] += [f's_cmp_lg_u32 s{sCNT}, 0', 's_cbranch_scc1 K2_NOWT'] + [x[0] if isinstance(x, tuple) else x for x in cond] + ['K2_NOWT:']
            if kind == 'first':
                if Q == 0:
                    gaps[26].insert(0, lambda: e.vmwait('arr'))
                    gaps[27].append(f'v_readfirstlane_b32 s{sT}, v26')
                    gaps[30] = [f's_cmp_eq_u32 s{sT}, 255\ns_cbranch_scc1 K2_BCAST\nK2_BACK0:'] + gaps[30]
                if Q == 4: gaps[21].append((f'buffer_load_dword v27, v24, {sr(SWS)}, s{sFL} offen offset:128 sc1', 'poll'))
                if Q == 5:
                    gaps[24].insert(0, 's_waitcnt vmcnt(0)')
                    gaps[25].append('v_cmp_ne_u32 vcc, 1, v27')
                    gaps[30] = ['s_cbranch_vccnz K2_SPIN1', 'K2_BACK1:'] + gaps[30]
                    gaps[28].insert(0, f's_mov_b32 s{ST+2}, s{sTZ}')
            if Q == 7:
                gaps[0] = [lambda: e.vmwait('kv'), 's_barrier'] + gaps[0]
                if tail:
                    gaps[last - 1].insert(0, tail[0])
                    gaps[last] += tail[1:]
            gaps[last].insert(0, 's_waitcnt lgkmcnt(0)')
            e.stream(mf, gaps)
        assert not dma and not nxt

    pool1 = [R('a', r) for r in range(128, 224, 4)] + [R('v', r) for r in range(128, 192, 4)]
    pool2 = [R('a', r) for r in range(0, 128, 4)] + [R('a', r) for r in range(224, 256, 4)] + [R('v', r) for r in list(range(32, 64, 4)) + list(range(96, 128, 4))]
    where = {}
    n1 = len(pool1) // 4
    n2 = len(pool2) // 4 - ORING
    for i in range(n1): where[i] = pool1[4 * i:4 * i + 4]
    for i in range(n2): where[n1 + i] = pool2[4 * i:4 * i + 4]
    free = pool2[4 * n2:]
    LD0 = n1 + n2
    AREA = {LD0 + i: a for i, a in enumerate([EB, EB + 4096, 0, 4096, 65536, 65536 + 4096, 32768, 32768 + 4096, 98304, 98304 + 4096])}
    late = list(range(LD0 + 10, 32))
    def wodma(i):
        kk, out = LD0 + i, []
        for j in range(4):
            it = [f's_add_u32 m0, s{sW8K}, {AREA[kk]}', f's_add_u32 s{sK}, s{sWO}, {kk * 4096}'] if j == 0 else []
            out.append(it + [(f'buffer_load_dwordx4 v{L16}, {sr(SWS)}, s{sK} offen offset:{1024*j} sc1 lds', f'wo{kk}')])
        return out
    def fragload(kind, kk, slots):
        base, s_ = (sWO, sK) if kind == 'wo' else (sOB, sV)
        out = []
        for j in range(4):
            it = [f's_add_u32 s{s_}, s{base}, {kk * 4096}'] if j == 0 else []
            out.append(it + [(f'buffer_load_dwordx4 {slots[j]}, v{L16}, {sr(SWS)}, s{s_} offen offset:{1024*j} sc1', f'{kind}{kk}')])
        return out

    first_qk()
    stamp(e, opt, 'qk0')
    iteration(0, 'first', tail=[f's_mov_b32 s{sCNT}, 6'])
    stamp(e, opt, 'it0')
    e('.p2align 6\nK2_LOOP:')
    wt = [wotouch(i) for i in (2, 3, 0, 1)] if not opt.get('nowt') else []
    W13 = int(opt.get('w13', 2))
    iteration(1, 'mid', tail=[f's_cmp_eq_u32 s{sCNT}, 0', 's_cbranch_scc1 K2_FIN'], cond=sum(wt[:W13], []))
    iteration(0, 'mid', tail=[f's_sub_u32 s{sCNT}, s{sCNT}, 1', 's_branch K2_LOOP'])
    e('K2_FIN:')
    stamp(e, opt, 'mid')
    cdma = wodma(4) + wodma(5)
    iteration(0, 'last', dma=vdma(1)[ND:] + wodma(0) + wodma(1) + wodma(2) + wodma(3), nxt=cdma[:ND],
              extra=dict(zip([1, 3, 5, 6][W13:] if W13 < 2 else [1, 5], wt[W13:])))
    stamp(e, opt, 'loop')

    NPRE, NPOST, PACE = int(opt.get('npre', 26)), int(opt.get('npost', 12)), int(opt.get('pace', 4))
    mem = cdma[ND:] + [x for kk in range(n1) for x in fragload('wo', kk, where[kk])]
    srd_items = []
    for d, p_, sz in ((SX, pX, 0x200000), (SOUT, pOUT, 0x200000), (SB2, pB2, 1024)):
        srd_items += [f's_mov_b32 s{d}, s{p_}', f's_mov_b32 s{d+1}, s{p_+1}', f's_mov_b32 s{d+2}, {sz}', f's_mov_b32 s{d+3}, 0x20000']
    hi = [f'v_add_f32 v{L+4*qb+2}, v{L+4*qb}, v{L+4*qb+1}' for qb in range(4)]
    hi += [f'v_rcp_f32 v{L+4*qb+3}, v{L+4*qb+2}' for qb in range(4)]
    hi += [f'v_add_f32 v27, v{L+2}, v{L+6}', f'v_add_f32 v26, v{L+10}, v{L+14}', 'v_and_b32 v24, 3, v2', 'v_add_f32 v27, v27, v26',
           'v_lshlrev_b32 v24, 13, v24', f'v_cmp_ngt_f32 vcc, s{sC1}, v27', f's_lshl_b32 s{sT}, s{sW}, 2', f'v_add_u32 v24, s{sT}, v24',
           f's_cmp_lg_u64 vcc, 0\ns_cselect_b32 s{sC0}, 1, 0', f'v_mov_b32 v27, s{sC0}', 'ds_write_b32 v24, v27 offset:32768',
           f'v_mov_b32 v25, s{sW8K}']
    epi = []
    tb = [32, 40, 48, 56, 96, 104, 112, 120]
    for t in range(4):
        for qb in range(4):
            b = tb[(4 * t + qb) % 8]
            ops = [f'v_accvgpr_read_b32 v{b+4*h+r}, a{aO + 16*(2*t+h) + 4*qb + r}' for h in range(2) for r in range(4)]
            ops += [f'v_mul_f32 v{b+i}, v{b+i}, v{L+4*qb+3}' for i in range(8)]
            ops += [f'v_cvt_pk_bf16_f32 v{b+i}, v{b+2*i}, v{b+2*i+1}' for i in range(4)]
            if qb == 0: ops.append(f's_add_u32 s{sV}, s{sXB}, {4096 * t}')
            ops.append((f'buffer_store_dwordx4 {R("v",b)}, v{L16}, {sr(SWS)}, s{sV} offen offset:{1024*qb} sc1', 'ost'))
            epi += [(2 * t + 2, x) for x in ops]
    e(f'''s_mov_b32 s{sC1}, {f2u(2.0**60):#x}
    s_lshl_b32 s{sXB}, s{sQB}, 17
    s_lshl_b32 s{sT}, s{sHEAD}, 14
    s_add_u32 s{sXB}, s{sXB}, s{sT}
    s_add_u32 s{sXB}, s{sXB}, {O_OFF}''')
    def cost(x):
        if callable(x): return 0
        if isinstance(x, tuple): return 1
        if x.startswith('s_'): return 0
        return 2 if x.startswith(('v_exp', 'v_rcp')) else 1
    gi, lastvm, npre = 0, -9, 0
    for Q in range(8):
        mf = []
        for qb in range(4):
            o = R('a', aO + 16 * Q + 4 * qb)
            mf += [mfma(o, R('a', aV + 16 * (Q & 1) + 4 * ks), R('v', preg(1, qb, ks)), o) for ks in range(4)]
        if Q == 0: mf += [rowsum(1, sq, t) for t in range(2) for sq in range(4)]
        last = len(mf) - 1
        gaps = {i: [] for i in range(len(mf))}
        reads = vread(1, Q + 1, (Q + 1) & 1) if Q < 7 else []
        off = 0
        if Q == 0:
            xs, cs = softmax_ops(31, 1)
            for r in range(4): gaps[r].append(xs[r])
            gaps[4] += cs
            off = 5
            for i, x in enumerate(srd_items): gaps[5 + i].append(x)
        if Q == 3:
            assert not hi
            gaps[0] += ['s_barrier', 'ds_read_b128 v[24:27], v25 offset:32768']
            off = 1
        for i, x in enumerate(reads): gaps[off + i].append(x)
        if Q == 4:
            gaps[0].append('v_or_b32 v24, v24, v25'); gaps[1].append('v_or3_b32 v24, v24, v26, v27')
            gaps[2].append(f'v_readfirstlane_b32 s{sC0}, v24')
            gaps[4].insert(0, f's_andn2_b32 s{sC0}, s{sC0}, s{sPASS}\ns_cbranch_scc1 K2_SLOW')
            gaps[5].insert(0, 's_waitcnt vmcnt(30)')
        for i in range(len(mf)):
            room = 2 - sum(cost(x) for x in gaps[i])
            if room > 0 and npre < NPRE and gi - lastvm >= PACE:
                items = mem.pop(0)
                gaps[i] += items; room -= min(2, len(items)); npre += 1; lastvm = gi
            while room > 0:
                if hi and (Q, i) >= (1, 3) and not (Q == 2 and i > 10): x = hi.pop(0)
                elif epi and (epi[0][0] < Q or (epi[0][0] == Q and i >= 2)): x = epi.pop(0)[1]
                else: break
                if isinstance(x, tuple): lastvm = gi
                gaps[i].append(x); room -= cost(x)
            gi += 1
        if reads: gaps[last].insert(0, 's_waitcnt lgkmcnt(0)')
        e.stream(mf, gaps)
    e('s_nop 4')
    for _, x in epi: e.put(x)
    stamp(e, opt, 'pvlast')
    mem += wodma(6) + wodma(7) + [x for kk in range(n1, LD0) for x in fragload('wo', kk, where[kk])] + wodma(8) + wodma(9)
    assert len(mem) - 8 >= NPOST
    e(f's_waitcnt vmcnt({60 - NPOST})')
    for _ in range(NPOST): run(mem.pop(0))
    e(f'''s_lshr_b32 s{sT}, s{sW}, 1
    s_lshl_b32 s{sC0}, s{sTQ}, 1
    s_add_u32 s{sC0}, s{sC0}, s{sT}
    s_lshl_b32 s{sC0}, s{sC0}, 15
    s_and_b32 s{sT}, s{sW}, 1
    s_lshl_b32 s{sC1}, s{sCT}, 1
    s_add_u32 s{sC1}, s{sC1}, s{sT}
    s_lshl_b32 s{sC1}, s{sC1}, 6
    v_lshl_add_u32 v8, v1, 4, s{sC1}
    v_lshl_add_u32 v9, v3, 10, v8
    v_add_u32 v9, s{sC0}, v9
    v_add_u32 v10, 0x4000, v9
    v_add_u32 v12, s{sW8K}, v{L16}
    v_add_u32 v13, 0x10000, v12
    v_add_u32 v14, 0x20000, v12
    s_lshl_b32 s{sT}, s{sT}, 15
    s_lshr_b32 s{sC0}, s{sW}, 1
    s_lshl_b32 s{sC0}, s{sC0}, 11
    s_add_u32 s{sT}, s{sT}, s{sC0}
    v_add_u32 v15, s{sT}, v{L16}
    v_mov_b32 v25, 1
    v_lshlrev_b32 v26, 8, v2
    s_lshr_b32 s{sXB}, s2, 5
    s_lshl_b32 s{sXB}, s{sXB}, 13
    s_lshl_b32 s{sT}, s{sHEAD}, 2
    s_add_u32 s{sXB}, s{sXB}, s{sT}
    s_add_u32 s{sXB}, s{sXB}, {FL_OFF}
    v_and_b32 v24, 7, v2
    s_lshl_b32 s{sT}, s{sW}, 5
    v_lshl_add_u32 v24, v24, 2, s{sT}
    v_lshrrev_b32 v16, 2, v2
    v_and_b32 v17, 3, v2
    v_lshlrev_b32 v17, 7, v17
    v_lshl_add_u32 v16, v16, 12, v17
    s_lshl_b32 s{sT}, s{sCT}, 9
    v_add_u32 v16, s{sT}, v16
    s_add_u32 s{sC1}, s{sOB}, 65536
    v_mov_b32 v28, 1''')
    e.vmwait('ost')
    e('s_barrier')
    e(f'''s_cmp_lg_u32 s{sW}, 0
    s_cbranch_scc1 K2_SIG2
    s_mov_b32 exec_hi, 0
    buffer_store_dword v25, v26, {sr(SWS)}, s{sXB} offen sc1
    s_mov_b64 exec, -1
    K2_SIG2:''')
    stamp(e, opt, 'drain')
    e.vm(f'buffer_load_dwordx4 v[4:7], v8, {sr(SB2)}, 0 offen', 'b2')
    e.vm(f'buffer_load_dwordx4 v[68:71], v9, {sr(SX)}, 0 offen', 'x')
    e.vm(f'buffer_load_dwordx4 v[72:75], v10, {sr(SX)}, 0 offen', 'x')
    poll = f'buffer_load_dword v27, v24, {sr(SWS)}, s{sFL} offen sc1'
    otouch = '' if opt.get('noot') else f'buffer_load_dword v{TD}, v16, {sr(SWS)}, s{sOB} offen sc1\nbuffer_load_dword v{TD}, v16, {sr(SWS)}, s{sC1} offen sc1\n'
    BATCH = int(opt.get('batch', 8))
    nb_ = 0
    while mem:
        if nb_: e.vm(poll, 'poll')
        for _ in range(min(BATCH, len(mem))): run(mem.pop(0))
        if nb_:
            e.vmwait('poll')
            e(f'v_cmp_ne_u32 vcc, v28, v27\ns_nop 4\ns_cbranch_vccnz K2_PB{nb_}\n{otouch}v_mov_b32 v28, -1\nK2_PB{nb_}:')
        if nb_ == 1:
            e(f's_mov_b32 s{sT}, {f2u(-LOG2E):#x}')
            for i in range(4): e(f'v_lshlrev_b32 v{192+2*i}, 16, v{4+i}\nv_and_b32 v{193+2*i}, 0xffff0000, v{4+i}')
            gs = [(G + 8 * a + 4 * q + r, 192 + 4 * a + r, 200 + 8 * a + 4 * q + r) for a in range(2) for q in range(2) for r in range(4)]
            for g, b, t in gs: e(f'v_add_f32 v{g}, v{g}, v{b}')
            for g, b, t in gs: e(f'v_mul_f32 v{t}, s{sT}, v{g}')
            for g, b, t in gs: e(f'v_exp_f32 v{t}, v{t}')
            for g, b, t in gs: e(f'v_add_f32 v{t}, 1.0, v{t}')
            for g, b, t in gs: e(f'v_rcp_f32 v{t}, v{t}')
            for g, b, t in gs: e(f'v_mul_f32 v{g}, v{g}, v{t}')
        nb_ += 1
    stamp(e, opt, 'sent')
    e(f'''v_cmp_ne_u32 vcc, 1, v28
    s_mov_b32 s{sCNT}, 200000
    s_nop 3
    s_cbranch_vccnz K2_RDY
    K2_POLL2:
    {poll}
    s_waitcnt vmcnt(0)
    v_cmp_ne_u32 vcc, 1, v27
    s_sub_u32 s{sCNT}, s{sCNT}, 1
    s_cbranch_scc1 K2_RDY
    s_nop 2
    s_cbranch_vccnz K2_POLL2
    {otouch}
    K2_RDY:''')
    stamp(e, opt, 'wait')
    ACC = 192
    oat = {}
    queue = []
    for kk in range(32):
        if kk in late: queue.append(('wo', kk))
        queue.append(('o', kk))
    def issue_next():
        kind, kk = queue.pop(0)
        sl = [free.pop(0) for _ in range(4)]
        (where if kind == 'wo' else oat)[kk] = sl
        return fragload(kind, kk, sl)
    while len(free) >= 4:
        for it in issue_next(): run(it)
    def ldsread(kk):
        a = AREA[kk]
        return [f'ds_read_b128 {where[kk][j]}, v{12 + (a >> 16)} offset:{(a & 0xffff) + 1024*j}' for j in range(4)]
    e.vmwait('o0')
    stamp(e, opt, 'o1st')
    for kk in range(32):
        mf = []
        for nb in range(4):
            for qb in range(4):
                d = R('v', ACC + 16 * nb + 4 * qb)
                mf.append(mfma(d, where[kk][nb], oat[kk][qb], '0' if kk == 0 else d))
        gaps = {i: [] for i in range(16)}
        nk = kk + 1
        if nk in AREA:
            where[nk] = [free.pop(0) for _ in range(4)]
            for i, x in enumerate(ldsread(nk)): gaps[1 + 2 * i].append(x)
        inflight = e.vmn(f'o{kk}')
        its = []
        while queue and len(free) >= 4 and len(its) < 8 and inflight + 4 <= MAXFLY:
            its += issue_next(); inflight += 4
        for i, it in enumerate(its): gaps[i * (4 if len(its) == 4 else 2)] += it
        if nk < 32: gaps[15].append(lambda nk=nk: e.vmwait(f'o{nk}', f'wo{nk}', extra=' lgkmcnt(0)' if nk in AREA else ''))
        e.stream(mf, gaps)
        free += where[kk] + oat[kk]
    assert not queue
    stamp(e, opt, 'main')
    e('s_nop 4')
    for f in range(16):
        e(f'ds_write_b128 v12, {R("v", ACC + 4*f)} offset:{(f >> 3) * 32768 + (f & 7) * 1024}')
        if f == 11: e('s_waitcnt lgkmcnt(4)')
    for q in range(2):
        for i in range(4): e(f'v_lshlrev_b32 v{32+8*q+2*i}, 16, v{68+4*q+i}\nv_and_b32 v{33+8*q+2*i}, 0xffff0000, v{68+4*q+i}')
    e('s_waitcnt lgkmcnt(0)\ns_barrier')
    for q in range(2):
        for a in range(2):
            for s_ in range(4): e(f'ds_read_b128 {R("v", 128 + 32*q + 16*a + 4*s_)}, v15 offset:{s_*8192 + a*4096 + q*1024}')
        if q == 0: e('s_waitcnt lgkmcnt(4)')
    for q in range(2):
        e(f's_waitcnt lgkmcnt({8 - 8*q})')
        for a in range(2):
            b = 128 + 32 * q + 16 * a
            for r in range(4): e(f'v_add_f32 v{b+r}, v{b+r}, v{b+4+r}\nv_add_f32 v{b+8+r}, v{b+8+r}, v{b+12+r}')
            for r in range(4): e(f'v_add_f32 v{b+r}, v{b+r}, v{b+8+r}')
            for r in range(4): e(f'v_fma_f32 v{32+8*q+4*a+r}, v{b+r}, v{G+8*a+4*q+r}, v{32+8*q+4*a+r}')
        for i in range(4): e(f'v_cvt_pk_bf16_f32 v{48+4*q+i}, v{32+8*q+2*i}, v{33+8*q+2*i}')
        e(f'buffer_store_dwordx4 {R("v", 48+4*q)}, v{9+q}, {sr(SOUT)}, 0 offen')
    if opt.get('ts'):
        e(f's_waitcnt vmcnt(0)\ns_memrealtime s[{64+2*NSTAMP}:{65+2*NSTAMP}]\ns_memtime s[46:47]\ns_waitcnt lgkmcnt(0)')
        srd(e, 28, pWS, TS_OFF, 0x20000)
        e('v_lshrrev_b32 v2, 6, v0\ns_lshl_b32 s3, s2, 2\nv_add_u32 v2, s3, v2\nv_lshlrev_b32 v2, 6, v2')
        for k, s_ in enumerate([62] + [64 + 2 * i for i in range(NSTAMP)] + [46, 64 + 2 * NSTAMP]):
            e(f'v_mov_b32 v3, s{s_}\nbuffer_store_dword v3, v2, s[28:31], 0 offen offset:{4*k}')
    e('K2_END:\ns_endpgm')
    e(f'''K2_SPIN1:
    s_mov_b32 s{sCNT}, 200000
    K2_SPIN1L:
    buffer_load_dword v27, v24, {sr(SWS)}, s{sFL} offen offset:128 sc1
    s_waitcnt vmcnt(0)
    v_cmp_ne_u32 vcc, 1, v27
    s_sub_u32 s{sCNT}, s{sCNT}, 1
    s_cbranch_scc1 K2_BACK1
    s_nop 2
    s_cbranch_vccnz K2_SPIN1L
    s_branch K2_BACK1''')
    e('K2_BCAST:\nv_lshlrev_b32 v26, 8, v2')
    for i in range(4): e(f's_mov_b32 s{sT}, {FL_OFF + 128 + i * 16384}\nbuffer_store_dword v25, v26, {sr(SWS)}, s{sT} offen sc1')
    e('s_branch K2_BACK0')
    e(f'''K2_SLOW:
    s_mov_b32 s{sPASS}, 1
    s_waitcnt vmcnt(0) lgkmcnt(0)
    s_nop 7
    s_barrier
    s_branch K2_TOP
    K2_MAXP:
    s_mov_b32 s{sK}, s{sW8K}
    s_mov_b32 s{sCNT}, 16
    s_waitcnt vmcnt(0)''')
    for qb in range(4): e(f'v_mov_b32 v{24+qb}, 0xff800000')
    e('K2_MAXL:\ns_barrier')
    for it in kdma(0): run(it)
    e('s_waitcnt vmcnt(0)\ns_barrier')
    for kb in range(8):
        for x in kread(0, kb, 0): e(x)
        e('s_waitcnt lgkmcnt(0)')
        for qb in range(4):
            for x in qk(0, qb, qb, '0'): e(x)
        e('s_nop 7')
        for qb in range(4): e(f'v_max3_f32 v{24+qb}, v{24+qb}, v{S+4*qb}, v{S+4*qb+1}')
        for qb in range(4): e(f'v_max3_f32 v{24+qb}, v{24+qb}, v{S+4*qb+2}, v{S+4*qb+3}')
    e(f's_sub_u32 s{sCNT}, s{sCNT}, 1\ns_cmp_lg_u32 s{sCNT}, 0\ns_cbranch_scc1 K2_MAXL')
    rowmax_to_ci(24)
    e(f's_mov_b32 s{sK}, s{sW8K}\ns_barrier')
    for it in kdma(0): run(it)
    e(f's_add_u32 s{sK}, s{sK}, 32768\ns_waitcnt vmcnt(0)\ns_barrier')
    for x in kread(0, 0, 0): e(x)
    e('s_waitcnt lgkmcnt(0)\ns_branch K2_ATT')
    return kdesc('attn_kernel', 512, 256, 102)

def build(opt):
    e = E()
    head = open(f'cdna_kernels/{NAME}.s.ref').read().split('; Override launch')[0]
    head += '''; @launch kernel=prep_kernel grid=(284,1,1) block=(256,1,1) lds=8192
; @launch kernel=attn_kernel grid=(256,1,1) block=(256,1,1) lds=163840
'''
    e('.amdgcn_target "amdgcn-amd-amdhsa--gfx950"\n.text')
    d = k1(e, opt) + k2(e, opt)
    return head + e.text() + '.section .rodata,"a"\n' + d

if __name__ == '__main__':
    out = sys.argv[1] if len(sys.argv) > 1 else f'cdna_kernels/{NAME}.s'
    opt = dict(a.split('=') if '=' in a else (a, 1) for a in sys.argv[2:])
    txt = build(opt)
    open(out, 'w').write(txt)
    import chk
    errs = chk.check(txt)
    for x in errs[:40]: print(x)
    print(f'{out}: {len(txt)} bytes, {len(errs)} hazard problems')
```

```python
import sys, math
sys.path.insert(0, 'dev')
from gen_base import *

H_OFF, WOP_OFF, O_OFF, W2P_OFF, TS_OFF = 0x400000, 0xC00000, 0x1000000, 0x2000000, 0x2400000
FL_OFF = 0x300000
H_SIZE, W2P_SIZE, WS_SIZE = 128 * 56 * 1024, 8 * 56 * 4096, 0x2400000
NSTAMP = 11

TSETS = {'a': 'start load0 qproj epi1 qk0 loop pvlast drain wait o1st main'.split(),
         'b': 'start qk0 it0 mid loop pvlast drain sent wait o1st main'.split()}
def stamp(e, opt, name):
    if opt.get('ts') and name in TSETS[opt['ts']]:
        k = TSETS[opt['ts']].index(name)
        e(f's_memtime s[{64+2*k}:{65+2*k}]')

def k2(e, opt):
    e.vml = []
    khead(e, 'attn_kernel')
    SK, SV, SWQ, SW1, SWS, SH, SC, SD, SDBG = 4, 8, 12, 16, 20, 24, 28, 32, 40
    SX, SOUT, SB2 = 12, 16, 24
    pX, pK, pV, pWQ, pWO, pW1, pW2, pB2, pOUT, pDBG, pWS = 36, 38, 40, 42, 44, 48, 52, 54, 56, 58, 60
    sC0, sC1, sFL = 46, 47, 50
    sHEAD, sW, sW1K, sW8K, sK, sV, sCNT, sT, sPASS, sXB, sQB, sMA, sMB, sTQ = range(88, 102)
    sCT, sRB, sWO, sOB = 38, 39, 48, 49
    ONES, KA, VA, KD, VD, IDX, L16 = 4, 8, 12, 20, 21, 22, 23
    S, CI, L, G, M2, P = 32, 48, 64, 80, 96, 128
    aO, aQ, aK, aV = 0, 128, 192, 224
    WQA, W1A, WQD, W1D, RS = 24, 28, 8, 9, 12
    AF, HA, QA = 32, 64, 128
    EB = 0x20000
    ORING = int(opt.get('oring', 5))
    ND = 6
    ST, sTO, sTS, sTZ = 28, 44, 45, 51
    TD, TV, WTV = 29, 30, 31
    MSC = '' if opt.get('mplain') else ' sc1'
    OSC = '' if opt.get('oplain') else ' sc1'
    MAXFLY = int(opt.get('maxfly', 40))
    def sr(b): return f's[{b}:{b+3}]'
    e(f'''s_cmp_ge_u32 s2, 256
    s_cbranch_scc1 K2_END
    s_mov_b32 s{sPASS}, 0
    K2_TOP:
    s_load_dwordx16 s[36:51], s[0:1], 0
    s_load_dwordx8 s[52:59], s[0:1], 64
    s_load_dwordx2 s[60:61], s[0:1], 96''')
    if opt.get('ts'): e('s_memrealtime s[62:63]')
    stamp(e, opt, 'start')
    if opt.get('ct'):
        e(f'''s_getpc_b64 s[4:5]
        K2_PC:
        v_lshlrev_b32 v4, 7, v0
        v_mov_b32 v5, 0
        v_mov_b32 v7, 0
        v_add_u32 v6, 32768, v4
        v_lshl_add_u64 v[4:5], v[4:5], 0, s[4:5]
        v_min_u32 v6, K2_LAST - K2_PC, v6''')
        e.vm(f'global_load_dword v32, v[4:5], off', 'touch')
        e('v_lshl_add_u64 v[6:7], v[6:7], 0, s[4:5]')
        e.vm(f'global_load_dword v33, v[6:7], off', 'touch')
    e(f'''s_and_b32 s{sHEAD}, s2, 7
    s_lshl_b32 s{sHEAD}, s{sHEAD}, 2
    s_lshr_b32 s{sT}, s2, 3
    s_and_b32 s{sT}, s{sT}, 3
    s_add_u32 s{sHEAD}, s{sHEAD}, s{sT}
    v_lshrrev_b32 v1, 6, v0
    v_and_b32 v2, 63, v0
    v_readfirstlane_b32 s{sW}, v1
    v_lshlrev_b32 v{L16}, 4, v2
    s_lshl_b32 s{sW1K}, s{sW}, 10
    s_lshl_b32 s{sW8K}, s{sW}, 13
    s_lshr_b32 s{sQB}, s2, 5
    s_lshl_b32 s{sQB}, s{sQB}, 4
    s_lshl_b32 s{sT}, s{sW}, 2
    s_add_u32 s{sQB}, s{sQB}, s{sT}
    s_lshl_b32 s{sXB}, s{sQB}, 14
    s_waitcnt lgkmcnt(0)''')
    srd(e, SWS, pWS, 0, WS_SIZE)
    e(f'''s_lshl_b32 s{sFL}, s{sHEAD}, 3
    s_lshr_b32 s{sT}, s2, 5
    s_add_u32 s{sFL}, s{sFL}, s{sT}
    s_lshl_b32 s{sFL}, s{sFL}, 8
    s_add_u32 s{sFL}, s{sFL}, {FL_OFF}
    v_lshlrev_b32 v4, 2, v2
    v_mov_b32 v5, 0
    s_cmp_lg_u32 s{sPASS}, 0
    s_cbranch_scc1 K2_NOZ
    buffer_store_dword v5, v4, {sr(SWS)}, s{sFL} offen sc1
    K2_NOZ:''')
    e(f's_lshl_b32 s{sT}, s{sHEAD}, 7')
    srd(e, SW1, pW1, f's{sT}', 0)
    e(f'''s_sub_u32 s{SW1+2}, {512*3584}, s{sT}
    s_cmp_lt_u32 s{sHEAD}, 28
    s_cselect_b32 s{SW1+2}, s{SW1+2}, 0''')
    e(f'''v_lshrrev_b32 v1, 4, v2
    v_and_b32 v3, 15, v2
    s_lshl_b32 s{sT}, s{sQB}, 8
    s_add_u32 s{sT}, s{sT}, {ST_OFF}
    v_lshlrev_b32 v10, 4, v3
    v_lshlrev_b32 v11, 4, v1''')
    for qb in range(4): e.vm(f'buffer_load_dwordx4 {R("v",128+4*qb)}, v10, {sr(SWS)}, s{sT} offen offset:{256*qb}', 'small')
    e(f's_lshl_b32 s{sT}, s{sHEAD}, 8\ns_add_u32 s{sCNT}, s{sT}, {B1_OFF}\ns_add_u32 s{sT}, s{sT}, {CS_OFF}')
    for fb in range(4): e.vm(f'buffer_load_dwordx4 {R("v",144+4*fb)}, v11, {sr(SWS)}, s{sCNT} offen offset:{64*fb}', 'small')
    for fb in range(4): e.vm(f'buffer_load_dwordx4 {R("v",160+4*fb)}, v11, {sr(SWS)}, s{sT} offen offset:{64*fb}', 'small')
    e(f'''v_lshrrev_b32 v10, 3, v2
    s_lshl_b32 s{sT}, s{sW}, 3
    v_add_u32 v10, s{sT}, v10
    v_mul_u32_u24 v10, 3584, v10
    v_and_b32 v11, 1, v1
    s_and_b32 s{sT}, s{sW}, 1
    s_lshl_b32 s{sT}, s{sT}, 1
    v_or_b32 v11, s{sT}, v11
    v_lshlrev_b32 v11, 1, v11
    v_and_b32 v16, 7, v2
    v_xor_b32 v11, v11, v16
    v_lshl_add_u32 v{W1D}, v11, 4, v10''')
    def w1dma(cc, t, tag):
        return [f's_add_u32 m0, s{sW1K}, {EB + (cc & 1) * 16384 + t * 4096}', f's_mov_b32 s{sT}, {(128*cc + 32*t) * 3584}',
                (f'buffer_load_dwordx4 v{W1D}, {sr(SW1)}, s{sT} offen lds', tag)]
    def wqdma(cc, t, tag):
        return [f's_add_u32 m0, s{sW1K}, {cc * 32768 + t * 4096}', f's_mov_b32 s{sT}, {(128*cc + 16*t) * 8192}',
                (f'buffer_load_dwordx4 v{WQD}, {sr(SWQ)}, s{sT} offen lds', tag)]
    def xnload(cc, qb, ks):
        pre = [f's_add_u32 s{sCNT}, s{sXB}, {qb * 16384 + cc * 4096}'] if ks == 0 else []
        return pre + [(f'buffer_load_dwordx4 {R("a", 64*cc + 16*qb + 4*ks)}, v{L16}, {sr(SWS)}, s{sCNT} offen offset:{1024*ks}', f'xn{cc}_{qb}')]
    def kvdma(lds, vd, srd_, so):
        out = []
        for t in range(8):
            grp, j = divmod(t, 4)
            it = [f's_add_u32 m0, s{sW8K}, {lds + grp * 4096}'] if j == 0 else []
            it.append((f'buffer_load_dwordx4 v{vd}, {sr(srd_)}, s{so} offen offset:{1024*j} lds', 'kv'))
            if j == 3: it.append(f's_add_u32 s{so}, s{so}, {4096 if grp == 0 else 28672}')
            out.append(it)
        return out
    def kdma(slot): return kvdma(slot * 32768, KD, SK, sK)
    def vdma(slot): return kvdma(65536 + slot * 32768, VD, SV, sV)
    def run(items):
        for it in items:
            if isinstance(it, tuple) and e.l[-1].strip().startswith('s_add_u32 m0'): e('s_nop 0')
            e.put(it)
    for t in range(4): run(w1dma(0, t, 'w0'))
    for qb in range(4):
        for ks in range(4): run(xnload(0, qb, ks))
    e(f's_lshl_b32 s{sT}, s{sHEAD}, 8')
    srd(e, SWQ, pWQ, f's{sT}', 0)
    e(f'''s_sub_u32 s{SWQ+2}, {512*8192}, s{sT}
    s_lshl_b32 s{sT}, s{sW}, 2
    v_add_u32 v10, s{sT}, v1
    v_lshlrev_b32 v11, 2, v1
    v_xor_b32 v11, v11, v3
    v_lshlrev_b32 v11, 4, v11
    v_lshl_add_u32 v{WQD}, v10, 13, v11''')
    for t in range(8): run(wqdma(0, t, 'w0'))
    for t in range(4): run(w1dma(1, t, 'w1'))
    for t in range(8): run(wqdma(1, t, 'w1'))
    e(f's_lshl_b32 s{sT}, s{sHEAD}, 19')
    srd(e, SK, pK, f's{sT}', 0x80000)
    srd(e, SV, pV, f's{sT}', 0x80000)
    srd(e, SH, pWS, H_OFF, H_SIZE)
    e(f's_cmp_lt_u32 s{sHEAD}, 28\ns_cselect_b32 s{SH+2}, s{SH+2}, 0')
    srd(e, SDBG, pDBG, 0, 256)
    e.vm(f'buffer_load_dword v4, v{L16}, {sr(SDBG)}, 0 offen sc1', 'touch')
    srd(e, SD, pWS, W2P_OFF, W2P_SIZE)
    e(f's_cmp_lt_u32 s2, 112\ns_cselect_b32 s{SD+2}, s{SD+2}, 0')
    e(f's_mov_b32 s{sTQ}, s{sHEAD}\ns_lshr_b32 s{sCT}, s2, 5')
    e(f'''s_lshr_b32 s{sT}, s{sW}, 1
    s_lshl_b32 s{sMB}, s{sTQ}, 1
    s_add_u32 s{sMB}, s{sMB}, s{sT}
    s_mul_i32 s{sMB}, s{sMB}, {56*2048}
    s_add_u32 s{sMB}, s{sMB}, {H_OFF}
    s_and_b32 s{sT}, s{sW}, 1
    s_lshl_b32 s{sT}, s{sT}, 11
    s_mul_i32 s{sMA}, s{sCT}, {56*4096}
    s_add_u32 s{sMA}, s{sMA}, s{sT}
    s_add_u32 s{sMA}, s{sMA}, {W2P_OFF}
    s_lshl_b32 s{sT}, s{sW}, 17
    s_lshl_b32 s{sWO}, s{sCT}, 19
    s_add_u32 s{sWO}, s{sWO}, s{sT}
    s_add_u32 s{sWO}, s{sWO}, {WOP_OFF}
    s_lshl_b32 s{sOB}, s{sTQ}, 19
    s_add_u32 s{sOB}, s{sOB}, s{sT}
    s_add_u32 s{sOB}, s{sOB}, {O_OFF}''')
    e(f'''v_xor_b32 v11, v10, v3
    v_lshlrev_b32 v11, 4, v11
    v_lshl_add_u32 v{KD}, v1, 8, v11
    v_and_b32 v11, 7, v10
    v_lshlrev_b32 v11, 1, v11
    v_xor_b32 v11, v11, v3
    v_lshlrev_b32 v11, 4, v11
    v_lshl_add_u32 v{VD}, v1, 8, v11
    s_mov_b32 s{sK}, s{sW8K}
    s_mov_b32 s{sV}, s{sW8K}''')
    e(f'''v_lshrrev_b32 v10, 2, v3
    v_and_b32 v11, 3, v2
    v_lshl_add_u32 v16, v1, 3, v10''')
    for ds in range(4):
        e(f'v_xor_b32 v17, {ds}, v10\nv_lshl_add_u32 v17, v17, 2, v11\nv_lshlrev_b32 v17, 4, v17\nv_lshl_add_u32 v{WQA+ds}, v16, 8, v17')
    e(f'''v_lshrrev_b32 v17, 1, v10
    v_and_b32 v18, 1, v1
    v_lshl_add_u32 v17, v18, 1, v17
    v_lshlrev_b32 v18, 7, v16
    v_lshl_add_u32 v18, v11, 3, v18
    v_add_u32 v18, {EB}, v18''')
    for fb in range(4): e(f'v_xor_b32 v19, {fb}, v17\nv_lshl_add_u32 v{W1A+fb}, v19, 5, v18')
    RLD, RLA = 10, 11
    e(f'''v_lshrrev_b32 v16, 3, v2
    v_and_b32 v17, 7, v2
    v_lshlrev_b32 v17, 4, v17
    v_lshl_add_u32 v{RLD}, v16, 10, v17
    v_lshrrev_b32 v16, 2, v2
    v_lshlrev_b32 v17, 4, v11
    v_lshl_add_u32 v16, v16, 7, v17
    s_add_u32 s{sT}, s{sW8K}, {EB}
    v_add_u32 v{RLA}, s{sT}, v16''')
    e.vmwait('small')
    for fb in range(4):
        for qb in range(4):
            for r in range(4):
                d = HA + 16 * fb + 4 * qb + r
                e(f'v_mul_f32 v{d}, v{144+4*fb+r}, v{128+4*qb+1}')
                e(f'v_fma_f32 v{d}, -v{128+4*qb+2}, v{160+4*fb+r}, v{d}')
    for qb in range(4): e(f'v_mov_b32 v{RS+qb}, v{128+4*qb}')

    def aread(n):
        cc, blk = divmod(n, 12)
        out = []
        for ks in range(4):
            for u in range(2):
                d = AF + 16 * (n & 1) + 4 * ks + 2 * u
                if blk < 4: out.append(f'ds_read_b64_tr_b16 v[{d}:{d+1}], v{W1A+blk} offset:{(cc&1)*16384 + (32*ks+4*u)*128}')
                else:
                    ds, hb = divmod(blk - 4, 2)
                    out.append(f'ds_read_b64_tr_b16 v[{d}:{d+1}], v{WQA+ds} offset:{(cc&1)*32768 + (32*ks+4*u)*256 + 8*hb}')
        return out
    e.vmwait('w0')
    e('s_barrier')
    stamp(e, opt, 'load0')
    for x in aread(0): e(x)
    e('s_waitcnt lgkmcnt(0)')
    e.vmwait('xn0_0')
    def rldma(which, n):
        pre = []
        if n == 0:
            p, sz = (pWO, 4096 * 1024) if which == 0 else (pW2, 1792 * 1024)
            pre = [f's_mov_b32 s{SC}, s{p}', f's_mov_b32 s{SC+1}, s{p+1}', f's_mov_b32 s{SC+2}, {sz}', f's_mov_b32 s{SC+3}, 0x20000']
        return pre + [f's_add_u32 m0, s{sW8K}, {EB + which * 4096 + n * 1024}', f's_add_u32 s{sT}, s{sC0}, {n * 8192}',
                      (f'buffer_load_dwordx4 v{RLD}, {sr(SC)}, s{sT} offen lds', 'rl')]
    e(f'''s_lshr_b32 s{sC0}, s2, 1
    s_lshl_b32 s{sC0}, s{sC0}, 15
    s_and_b32 s{sC1}, s2, 1
    s_lshl_b32 s{sC1}, s{sC1}, 2
    s_add_u32 s{sC1}, s{sC1}, s{sW}
    s_lshl_b32 s{sT}, s{sC1}, 7
    s_add_u32 s{sC0}, s{sC0}, s{sT}''')
    bg = []
    for qb in range(4):
        for ks in range(4): bg.append((0, xnload(1, qb, ks)))
    bg += [(0, wqdma(2, t, 'w2')) for t in range(8)]
    for qb in range(4):
        for ks in range(4): bg.append((5, xnload(2, qb, ks)))
    bg += [(11, w1dma(2, t, 'w2')) for t in range(4)] + [(11, x) for x in kdma(0)]
    bg += [(12, wqdma(3, t, 'w3')) for t in range(8)]
    for qb in range(4):
        for ks in range(4): bg.append((12, xnload(3, qb, ks)))
    bg += [(23, w1dma(3, t, 'w3')) for t in range(4)] + [(23, x) for x in kdma(1)]
    bg += [(35, x) for x in vdma(0)]
    bg += [(40, rldma(wh, n)) for wh in range(2) for n in range(4)]
    for n in range(48):
        cc, blk = divmod(n, 12)
        mf, gaps = [], {i: [] for i in range(16)}
        acc = HA + 16 * blk if blk < 4 else QA + 16 * (blk - 4)
        for qb in range(4):
            for ks in range(4):
                d = R('v', acc + 4 * qb)
                c = '0' if (blk >= 4 and cc == 0 and ks == 0) else d
                mf.append(mfma(d, R('v', AF + 16 * (n & 1) + 4 * ks), R('a', 64 * cc + 16 * qb + 4 * ks), c))
        first = 0
        if blk == 11 and cc < 3:
            gaps[0].append(lambda cc=cc: e.vmwait(f'w{cc+1}'))
            gaps[0].append('s_barrier')
            first = 1
            if cc == 1:
                for ds in range(4): gaps[12 + ds].append(f'v_add_u32 v{WQA+ds}, 0x10000, v{WQA+ds}')
        if n == 40: gaps[0].append('s_barrier')
        if n < 47:
            for i, x in enumerate(aread(n + 1)): gaps[first + i].append(x)
        if blk == 0:
            for qb in range(1, 4): gaps[4 * qb - 1].insert(0, lambda cc=cc, qb=qb: e.vmwait(f'xn{cc}_{qb}'))
        for slot in (9, 11, 13, 15):
            if bg and bg[0][0] <= n and not (blk == 0 and slot == 11):
                items = bg.pop(0)[1]
                k = [i for i, it in enumerate(items) if isinstance(it, tuple)][0]
                gaps[slot - 1] = items[:k] + gaps[slot - 1]
                gaps[slot] = gaps[slot] + items[k:]
        if n < 47:
            w = [lambda: e('s_waitcnt lgkmcnt(0)')]
            if blk == 11: w = [lambda cc=cc: e.vmwait(f'xn{cc+1}_0', extra=' lgkmcnt(0)')]
            gaps[15] = w + gaps[15]
        e.stream(mf, gaps)
    assert not bg
    stamp(e, opt, 'qproj')
    c0 = -2 * math.sqrt(2 / math.pi) * LOG2E
    e(f's_mov_b32 s{sCNT}, {f2u(c0 * 0.044715):#x}\nv_mov_b32 v16, {f2u(c0):#x}')
    e(f's_mul_i32 s{sT}, s{sQB}, {56*1024}\ns_lshl_b32 s{sXB}, s{sHEAD}, 12\ns_add_u32 s{sT}, s{sT}, s{sXB}')
    for qb in range(4):
        for t in range(2):
            us = [HA + 16 * (2 * t + h) + 4 * qb + r for h in range(2) for r in range(4)]
            tm = [32 + 8 * t + i for i in range(8)]
            for u in us: e(f'v_mul_f32 v{u}, v{u}, v{RS+qb}')
            for u, x in zip(us, tm): e(f'v_mul_f32 v{x}, v{u}, v{u}')
            for u, x in zip(us, tm): e(f'v_fma_f32 v{x}, v{x}, s{sCNT}, v16')
            for u, x in zip(us, tm): e(f'v_mul_f32 v{x}, v{x}, v{u}')
            for u, x in zip(us, tm): e(f'v_exp_f32 v{x}, v{x}')
            for u, x in zip(us, tm): e(f'v_add_f32 v{x}, 1.0, v{x}')
            for u, x in zip(us, tm): e(f'v_rcp_f32 v{x}, v{x}')
            for u, x in zip(us, tm): e(f'v_mul_f32 v{x}, v{x}, v{u}')
            o = 48 + 8 * (qb & 1) + 4 * t
            for i in range(4): e(f'v_cvt_pk_bf16_f32 v{o+i}, v{tm[2*i]}, v{tm[2*i+1]}')
            e.vm(f'buffer_store_dwordx4 {R("v",o)}, v{L16}, {sr(SH)}, s{sT} offen offset:{2048*t + 1024*(qb&1)} sc1', 'hst')
        if qb == 1:
            e(f's_add_u32 s{sT}, s{sT}, {56*2048}')
            e.vmwait('rl')
            for wh in range(2):
                for nb in range(4):
                    for u in range(2):
                        d = 16 * wh + 4 * nb + 2 * u
                        e(f'ds_read_b64_tr_b16 a[{d}:{d+1}], v{RLA} offset:{wh*4096 + u*2048 + 64*(nb>>1) + 8*(nb&1)}')
                e('s_waitcnt lgkmcnt(0)')
    e(f'''s_lshr_b32 s{sT}, s2, 1
    s_lshl_b32 s{sT}, s{sT}, 12
    s_lshl_b32 s{sC0}, s{sC1}, 19
    s_add_u32 s{sC0}, s{sC0}, s{sT}
    s_add_u32 s{sC0}, s{sC0}, {WOP_OFF}
    s_mul_i32 s{sC1}, s{sC1}, {56*4096}
    s_add_u32 s{sC1}, s{sC1}, s{sT}''')
    for nb in range(4): e.vm(f'buffer_store_dwordx4 {R("a", 4*nb)}, v{L16}, {sr(SWS)}, s{sC0} offen offset:{1024*nb} sc1', 'hst')
    for nb in range(4): e.vm(f'buffer_store_dwordx4 {R("a", 16+4*nb)}, v{L16}, {sr(SD)}, s{sC1} offen offset:{1024*nb} sc1', 'hst')
    e(f's_mov_b32 s{sT}, {f2u(LOG2E / math.sqrt(128)):#x}')
    for ds in range(4):
        for qb in range(4):
            src = [QA + 16 * (2 * ds + hb) + 4 * qb + r for hb in range(2) for r in range(4)]
            for u in src: e(f'v_mul_f32 v{u}, s{sT}, v{u}')
            for i in range(4): e(f'v_cvt_pk_bf16_f32 v{src[i]}, v{src[2*i]}, v{src[2*i+1]}')
            for i in range(4): e(f'v_accvgpr_write_b32 a{aQ + 16*qb + 4*ds + i}, v{src[i]}')
    e(f'''v_lshrrev_b32 v24, 2, v3
    v_and_b32 v25, 3, v3
    v_lshlrev_b32 v25, 8, v25
    v_lshl_add_u32 v25, v24, 13, v25''')
    for ds in range(4):
        e(f'v_add_u32 v24, {4*ds}, v1\nv_xor_b32 v24, v24, v3\nv_lshl_add_u32 v{KA+ds}, v24, 4, v25')
    e(f'''v_lshrrev_b32 v24, 2, v2
    v_and_b32 v25, 7, v24
    v_and_b32 v26, 3, v2
    v_and_b32 v24, 3, v24
    v_lshlrev_b32 v24, 8, v24
    v_lshl_add_u32 v24, v1, 13, v24
    v_lshl_add_u32 v24, v26, 3, v24
    v_add_u32 v24, 0x10000, v24''')
    for db in range(8): e(f'v_xor_b32 v26, {db}, v25\nv_lshl_add_u32 v{VA+db}, v26, 5, v24')
    e(f'''v_and_b32 v24, 2, v2
    v_cmp_eq_u32 vcc, 0, v24
    v_mov_b32 v25, 0x3f803f80
    v_and_b32 v24, 1, v2
    v_cndmask_b32 v{ONES}, 0, v25, vcc
    v_cmp_eq_u32 vcc, 0, v24
    v_mov_b32 v{ONES+1}, v{ONES}
    v_mov_b32 v{ONES+2}, v{ONES}
    v_mov_b32 v{ONES+3}, v{ONES}
    v_mov_b32 v25, 0x44444444
    v_mov_b32 v{IDX}, 0xeeeeeeee
    v_cndmask_b32 v{IDX}, v{IDX}, v25, vcc''')
    for i in range(32): e(f'v_mov_b32 v{L+i}, 0')

    def kread(slot, kb, buf):
        return [f'ds_read_b128 {R("a", aK + 16*buf + 4*ds)}, v{KA+ds} offset:{slot*32768 + kb*1024}' for ds in range(4)]
    def vread(slot, db, buf):
        return [f'ds_read_b64_tr_b16 a[{aV+16*buf+4*ks+2*u}:{aV+16*buf+4*ks+2*u+1}], v{VA+db} offset:{slot*32768 + (2*ks+u)*1024}'
                for ks in range(4) for u in range(2)]
    def qk(buf, qb, sb, c):
        d = R('v', S + 4 * sb)
        return [mfma(d, R('a', aK + 16 * buf + 4 * ds), R('a', aQ + 16 * qb + 4 * ds), c if ds == 0 else d) for ds in range(4)]
    def rowmax_to_ci(src):
        for sw in ('v_permlane32_swap_b32', 'v_permlane16_swap_b32'):
            for qb in range(4): e(f'v_mov_b32 v{28+qb}, v{src+qb}')
            e('s_nop 0')
            for qb in range(4): e(f'{sw} v{src+qb}, v{28+qb}')
            e('s_nop 0')
            for qb in range(4): e(f'v_max_f32 v{src+qb}, v{src+qb}, v{28+qb}')
        for qb in range(4):
            for r in range(4): e(f'v_sub_f32 v{CI+4*qb+r}, 0, v{src+qb}')
    stamp(e, opt, 'epi1')
    e(f's_cmp_lg_u32 s{sPASS}, 0\ns_cbranch_scc1 K2_MAXP')
    for x in kread(0, 0, 0): e(x)
    e('s_waitcnt lgkmcnt(0)')
    for qb in range(4):
        for x in qk(0, qb, qb, '0'): e(x)
    e('s_nop 7')
    for qb in range(4): e(f'v_max3_f32 v{24+qb}, v{S+4*qb}, v{S+4*qb+1}, v{S+4*qb+2}')
    for qb in range(4): e(f'v_max_f32 v{24+qb}, v{24+qb}, v{S+4*qb+3}')
    rowmax_to_ci(24)
    e('K2_ATT:')
    e(f'''v_mov_b32 v24, 0
    v_mov_b32 v25, 1
    v_mov_b32 v26, 1
    s_lshr_b32 s{sT}, s2, 5
    s_lshl_b32 s{sT}, s{sT}, 5
    s_or_b32 s{sC0}, s{sPASS}, s{sW}''')
    e(f'''v_lshlrev_b32 v{TV}, 6, v2
    s_lshl_b32 s{sT}, s{sT}, 7
    s_mov_b32 s{ST}, s{SK}
    s_mov_b32 s{ST+1}, s{SK+1}
    s_mov_b32 s{ST+2}, 0x80000
    s_mov_b32 s{ST+3}, 0x20000
    s_mov_b32 s{sTZ}, 0x80000
    s_mov_b32 s{sTS}, 32768
    s_add_u32 s{sTO}, s{sT}, 65536
    s_cmp_eq_u32 s{sW}, 0
    s_cbranch_scc1 K2_TW
    s_mov_b32 s{ST}, s{SV}
    s_mov_b32 s{ST+1}, s{SV+1}
    s_add_u32 s{sTO}, s{sT}, 32768
    s_cmp_eq_u32 s{sW}, 1
    s_cbranch_scc1 K2_TW
    s_mov_b32 s{ST}, s{SWS}
    s_mov_b32 s{ST+1}, s{SWS+1}
    s_mov_b32 s{ST+2}, 0
    s_mov_b32 s{sTZ}, {WS_SIZE}
    s_mov_b32 s{sTS}, 16384
    s_and_b32 s{sT}, s{sTQ}, 3
    s_lshl_b32 s{sT}, s{sT}, 12
    s_add_u32 s{sTO}, s{sMA}, s{sT}
    s_sub_u32 s{sTO}, s{sTO}, {2048 + 32768 - 3 * 4096}
    s_cmp_eq_u32 s{sW}, 3
    s_cbranch_scc1 K2_TW
    s_mov_b32 s{sTS}, 8192
    s_lshl_b32 s{sT}, s{sCT}, 10
    s_add_u32 s{sTO}, s{sMB}, s{sT}
    s_sub_u32 s{sTO}, s{sTO}, {56 * 2048 + 16384 - 3 * 2048}
    v_lshrrev_b32 v27, 5, v2
    v_mul_u32_u24 v27, {56 * 2048}, v27
    v_and_b32 v{TV}, 31, v2
    v_lshl_add_u32 v{TV}, v{TV}, 5, v27
    K2_TW:
    v_lshrrev_b32 v27, 3, v2
    v_and_b32 v{WTV}, 7, v2
    v_lshlrev_b32 v{WTV}, 7, v{WTV}
    v_lshl_add_u32 v{WTV}, v27, 12, v{WTV}
    s_and_b32 s{sT}, s{sTQ}, 3
    s_lshl_b32 s{sT}, s{sT}, 10
    v_add_u32 v{WTV}, s{sT}, v{WTV}''')
    for i in range(2):
        e.vm(f'buffer_load_dword v{TD}, v{TV}, {sr(ST)}, s{sTO} offen sc1', 'touch')
        e(f's_add_u32 s{sTO}, s{sTO}, s{sTS}')

    def preg(par, qb, ks): return P + 64 * par + 16 * qb + 4 * ks
    def softmax_ops(gi, par):
        kb, qb = gi >> 2, gi & 3
        s = S + 4 * (gi & 3)
        p = preg(par, qb, kb >> 1) + 2 * (kb & 1)
        return ([f'v_exp_f32 v{s+r}, v{s+r}' for r in range(4)],
                [f'v_cvt_pk_bf16_f32 v{p+i}, v{s+2*i}, v{s+2*i+1}' for i in range(2)])
    def rowsum(par, sq, t): return f'v_smfmac_f32_16x16x64_bf16 {R("v", L+4*sq)}, {R("v", ONES)}, {R("v", preg(par, sq, 2*t), 8)}, v{IDX}'
    def m2loads(b):
        r = M2 + 16 * b
        return [(f'buffer_load_dwordx4 {R("v", r)}, v{L16}, {sr(SWS)}, s{sMA} offen{MSC}', f'm{b}'),
                (f'buffer_load_dwordx4 {R("v", r+8)}, v{L16}, {sr(SWS)}, s{sMB} offen{MSC}', f'm{b}'),
                (f'buffer_load_dwordx4 {R("v", r+4)}, v{L16}, {sr(SWS)}, s{sMA} offen offset:1024{MSC}', f'm{b}'),
                (f'buffer_load_dwordx4 {R("v", r+12)}, v{L16}, {sr(SWS)}, s{sMB} offen offset:1024{MSC}', f'm{b}')]
    m2adv = [f's_add_u32 s{sMA}, s{sMA}, 4096', f's_add_u32 s{sMB}, s{sMB}, 2048']
    def m2mfma(b):
        r = M2 + 16 * b
        return [mfma(R('v', G + 8 * a + 4 * q), R('v', r + 4 * a), R('v', r + 8 + 4 * q), R('v', G + 8 * a + 4 * q)) for a in range(2) for q in range(2)]
    def place(gaps, g, items):
        k = [i for i, it in enumerate(items) if isinstance(it, tuple)][0]
        for i, x in enumerate(items[:k]): gaps[g - k + i].insert(0, x)
        gaps[g].append(items[k])
        if g + 1 in gaps:
            for i, x in enumerate(items[k + 1:]): gaps[g + 1 + i].insert(0, x)
        else: gaps[g] += items[k + 1:]
    touch = [(f'buffer_load_dword v{TD}, v{TV}, {sr(ST)}, s{sTO} offen sc1', 'touch'), f's_add_u32 s{sTO}, s{sTO}, s{sTS}']
    def wotouch(i): return [f's_add_u32 s{sT}, s{sWO}, {32768 * i}', (f'buffer_load_dword v{TD}, v{WTV}, {sr(SWS)}, s{sT} offen sc1', 'touch')]

    def first_qk():
        p = 1
        dma = vdma(1)[:ND]
        for Q in range(8):
            mf, ex = [], []
            for qb in range(4):
                gi = 4 * Q + qb
                if gi >= 2: ex.append((len(mf), softmax_ops(gi - 2, 0)))
                mf += qk(Q & 1, qb, gi & 3, R('v', CI + 4 * qb))
            gaps = {i: [] for i in range(20)}
            reads = kread(0, Q + 1, (Q + 1) & 1) if Q < 7 else kread(1, 0, 0) + vread(0, 0, 0)
            for base, (xs, cs) in ex:
                for r in range(4): gaps[base + r].append(xs[r])
                gaps[base + 2].append(cs[0]); gaps[base + 4].append(cs[1])
            for i, x in enumerate(reads): gaps[1 + i].insert(0, x)
            gaps[15] += ['s_nop 0'] + gaps[16]
            if Q == 0: gaps[7].append('s_nop 0')
            if Q == 7:
                xs, cs = softmax_ops(30, 0)
                for it in dma:
                    k = [i for i, x in enumerate(it) if isinstance(x, tuple)][0]
                    gaps[15] += it[:k] + [xs.pop(0) if xs else 's_nop 0'] + it[k:]
                gaps[15] += xs + ['s_nop 0'] + cs
                gaps[0] = ['s_waitcnt vmcnt(0)', 's_barrier', f's_cmp_lg_u32 s{sC0}, 0', 's_cbranch_scc1 K2_SIG1', 's_mov_b64 exec, 1',
                           (f'buffer_atomic_add v26, v24, {sr(SDBG)}, 0 offen sc0', 'arr'), 's_mov_b64 exec, -1', 'K2_SIG1:'] + gaps[0]
            gaps[15].insert(0, 's_waitcnt lgkmcnt(0)')
            e.stream(mf, gaps)

    RG = [1, 1, 3, 7, 9, 9, 11, 15, 17, 17, 19, 23]
    def iteration(p, kind, tail=(), dma=None, nxt=None, cond=(), extra=None):
        if dma is None: dma = (vdma(1 - p) + kdma(p))[ND:]
        if nxt is None: nxt = vdma(p)[:ND]
        for Q in range(8):
            mf, ex = [], []
            for qb in range(4):
                gi = 4 * Q + qb
                base = len(mf)
                mf += qk(Q & 1, qb, gi & 3, R('v', CI + 4 * qb))
                o = R('a', aO + 16 * Q + 4 * qb)
                mf += [mfma(o, R('a', aV + 16 * (Q & 1) + 4 * ks), R('v', preg(p, qb, ks)), '0' if (kind == 'first' and ks == 0) else o) for ks in range(4)]
                ex.append((base, softmax_ops(31, p) if gi == 0 else softmax_ops(gi - 1, 1 - p)))
            m2 = kind != 'first' and Q & 1
            if m2: mf += m2mfma((Q >> 1) & 1)
            mf.append(rowsum(p, Q & 3, Q >> 2))
            last = len(mf) - 1
            gaps = {i: [] for i in range(len(mf))}
            if Q < 7: reads = kread(1 - p, Q + 1, (Q + 1) & 1) + vread(p, Q + 1, (Q + 1) & 1)
            else: reads = (kread(p, 0, 0) if kind != 'last' else []) + vread(1 - p, 0, 0)
            for g, x in zip(RG, reads): gaps[g].append(x)
            for base, (xs, cs) in ex:
                for r in range(4): gaps[base + 2 * r].append(xs[r])
                gaps[base + 3].append(cs[0]); gaps[base + 7].append(cs[1])
            slots = [5, 13, 21, 25, 29, 33 if m2 else 32]
            if not Q & 1 and (Q == 6 if kind == 'first' else (kind != 'last' or Q < 6)):
                ml = m2loads(1 - ((Q >> 1) & 1))
                for g, x in zip((5, 13, 21), ml): gaps[g].append(x)
                place(gaps, 29, [ml[3]] + m2adv)
                slots = [25]
            if Q == 6 and kind != 'last': place(gaps, 32, touch)
            src = nxt if Q == 7 else dma
            if extra and Q in extra: place(gaps, slots.pop(0), extra[Q])
            for g in slots:
                if src: place(gaps, g, src.pop(0))
            if m2: gaps[31].insert(0, lambda b=(Q >> 1) & 1: e.vmwait(f'm{b}'))
            if Q == 5 and cond:
                gaps[5] += [f's_cmp_lg_u32 s{sCNT}, 0', 's_cbranch_scc1 K2_NOWT'] + [x[0] if isinstance(x, tuple) else x for x in cond] + ['K2_NOWT:']
            if kind == 'first':
                if Q == 0:
                    gaps[26].insert(0, lambda: e.vmwait('arr'))
                    gaps[27].append(f'v_readfirstlane_b32 s{sT}, v26')
                    gaps[30] = [f's_cmp_eq_u32 s{sT}, 255\ns_cbranch_scc1 K2_BCAST\nK2_BACK0:'] + gaps[30]
                if Q == 4: gaps[21].append((f'buffer_load_dword v27, v24, {sr(SWS)}, s{sFL} offen offset:128 sc1', 'poll'))
                if Q == 5:
                    gaps[24].insert(0, 's_waitcnt vmcnt(0)')
                    gaps[25].append('v_cmp_ne_u32 vcc, 1, v27')
                    gaps[30] = ['s_cbranch_vccnz K2_SPIN1', 'K2_BACK1:'] + gaps[30]
                    gaps[28].insert(0, f's_mov_b32 s{ST+2}, s{sTZ}')
            if Q == 7:
                gaps[0] = [lambda: e.vmwait('kv'), 's_barrier'] + gaps[0]
                if tail:
                    gaps[last - 1].insert(0, tail[0])
                    gaps[last] += tail[1:]
            gaps[last].insert(0, 's_waitcnt lgkmcnt(0)')
            e.stream(mf, gaps)
        assert not dma and not nxt

    pool1 = [R('a', r) for r in range(128, 224, 4)] + [R('v', r) for r in range(128, 192, 4)]
    pool2 = [R('a', r) for r in range(0, 128, 4)] + [R('a', r) for r in range(224, 256, 4)] + [R('v', r) for r in list(range(32, 64, 4)) + list(range(96, 128, 4))]
    where = {}
    n1 = len(pool1) // 4
    n2 = len(pool2) // 4 - ORING
    for i in range(n1): where[i] = pool1[4 * i:4 * i + 4]
    for i in range(n2): where[n1 + i] = pool2[4 * i:4 * i + 4]
    free = pool2[4 * n2:]
    LD0 = n1 + n2
    AREA = {LD0 + i: a for i, a in enumerate([EB, EB + 4096, 0, 4096, 65536, 65536 + 4096, 32768, 32768 + 4096, 98304, 98304 + 4096])}
    late = list(range(LD0 + 10, 32))
    def wodma(i):
        kk, out = LD0 + i, []
        for j in range(4):
            it = [f's_add_u32 m0, s{sW8K}, {AREA[kk]}', f's_add_u32 s{sK}, s{sWO}, {kk * 4096}'] if j == 0 else []
            out.append(it + [(f'buffer_load_dwordx4 v{L16}, {sr(SWS)}, s{sK} offen offset:{1024*j} sc1 lds', f'wo{kk}')])
        return out
    def fragload(kind, kk, slots):
        base, s_ = (sWO, sK) if kind == 'wo' else (sOB, sV)
        out = []
        for j in range(4):
            it = [f's_add_u32 s{s_}, s{base}, {kk * 4096}'] if j == 0 else []
            out.append(it + [(f'buffer_load_dwordx4 {slots[j]}, v{L16}, {sr(SWS)}, s{s_} offen offset:{1024*j} sc1', f'{kind}{kk}')])
        return out

    first_qk()
    stamp(e, opt, 'qk0')
    iteration(0, 'first', tail=[f's_mov_b32 s{sCNT}, 6'])
    stamp(e, opt, 'it0')
    e('.p2align 6\nK2_LOOP:')
    wt = [wotouch(i) for i in (2, 3, 0, 1)] if not opt.get('nowt') else []
    W13 = int(opt.get('w13', 2))
    iteration(1, 'mid', tail=[f's_cmp_eq_u32 s{sCNT}, 0', 's_cbranch_scc1 K2_FIN'], cond=sum(wt[:W13], []))
    iteration(0, 'mid', tail=[f's_sub_u32 s{sCNT}, s{sCNT}, 1', 's_branch K2_LOOP'])
    e('K2_FIN:')
    stamp(e, opt, 'mid')
    cdma = wodma(4) + wodma(5)
    iteration(0, 'last', dma=vdma(1)[ND:] + wodma(0) + wodma(1) + wodma(2) + wodma(3), nxt=cdma[:ND],
              extra=dict(zip([1, 3, 5, 6][W13:] if W13 < 2 else [1, 5], wt[W13:])))
    stamp(e, opt, 'loop')

    NPRE, NPOST, PACE = int(opt.get('npre', 26)), int(opt.get('npost', 12)), int(opt.get('pace', 4))
    mem = cdma[ND:] + [x for kk in range(n1) for x in fragload('wo', kk, where[kk])]
    srd_items = []
    for d, p_, sz in ((SX, pX, 0x200000), (SOUT, pOUT, 0x200000), (SB2, pB2, 1024)):
        srd_items += [f's_mov_b32 s{d}, s{p_}', f's_mov_b32 s{d+1}, s{p_+1}', f's_mov_b32 s{d+2}, {sz}', f's_mov_b32 s{d+3}, 0x20000']
    hi = [f'v_add_f32 v{L+4*qb+2}, v{L+4*qb}, v{L+4*qb+1}' for qb in range(4)]
    hi += [f'v_rcp_f32 v{L+4*qb+3}, v{L+4*qb+2}' for qb in range(4)]
    hi += [f'v_add_f32 v27, v{L+2}, v{L+6}', f'v_add_f32 v26, v{L+10}, v{L+14}', 'v_and_b32 v24, 3, v2', 'v_add_f32 v27, v27, v26',
           'v_lshlrev_b32 v24, 13, v24', f'v_cmp_ngt_f32 vcc, s{sC1}, v27', f's_lshl_b32 s{sT}, s{sW}, 2', f'v_add_u32 v24, s{sT}, v24',
           f's_cmp_lg_u64 vcc, 0\ns_cselect_b32 s{sC0}, 1, 0', f'v_mov_b32 v27, s{sC0}', 'ds_write_b32 v24, v27 offset:32768',
           f'v_mov_b32 v25, s{sW8K}']
    epi = []
    tb = [32, 40, 48, 56, 96, 104, 112, 120]
    for t in range(4):
        for qb in range(4):
            b = tb[(4 * t + qb) % 8]
            ops = [f'v_accvgpr_read_b32 v{b+4*h+r}, a{aO + 16*(2*t+h) + 4*qb + r}' for h in range(2) for r in range(4)]
            ops += [f'v_mul_f32 v{b+i}, v{b+i}, v{L+4*qb+3}' for i in range(8)]
            ops += [f'v_cvt_pk_bf16_f32 v{b+i}, v{b+2*i}, v{b+2*i+1}' for i in range(4)]
            if qb == 0: ops.append(f's_add_u32 s{sV}, s{sXB}, {4096 * t}')
            ops.append((f'buffer_store_dwordx4 {R("v",b)}, v{L16}, {sr(SWS)}, s{sV} offen offset:{1024*qb} sc1', 'ost'))
            epi += [(2 * t + 2, x) for x in ops]
    e(f'''s_mov_b32 s{sC1}, {f2u(2.0**60):#x}
    s_lshl_b32 s{sXB}, s{sQB}, 17
    s_lshl_b32 s{sT}, s{sHEAD}, 14
    s_add_u32 s{sXB}, s{sXB}, s{sT}
    s_add_u32 s{sXB}, s{sXB}, {O_OFF}''')
    def cost(x):
        if callable(x): return 0
        if isinstance(x, tuple): return 1
        if x.startswith('s_'): return 0
        return 2 if x.startswith(('v_exp', 'v_rcp')) else 1
    gi, lastvm, npre = 0, -9, 0
    for Q in range(8):
        mf = []
        for qb in range(4):
            o = R('a', aO + 16 * Q + 4 * qb)
            mf += [mfma(o, R('a', aV + 16 * (Q & 1) + 4 * ks), R('v', preg(1, qb, ks)), o) for ks in range(4)]
        if Q == 0: mf += [rowsum(1, sq, t) for t in range(2) for sq in range(4)]
        last = len(mf) - 1
        gaps = {i: [] for i in range(len(mf))}
        reads = vread(1, Q + 1, (Q + 1) & 1) if Q < 7 else []
        off = 0
        if Q == 0:
            xs, cs = softmax_ops(31, 1)
            for r in range(4): gaps[r].append(xs[r])
            gaps[4] += cs
            off = 5
            for i, x in enumerate(srd_items): gaps[5 + i].append(x)
        if Q == 3:
            assert not hi
            gaps[0] += ['s_barrier', 'ds_read_b128 v[24:27], v25 offset:32768']
            off = 1
        for i, x in enumerate(reads): gaps[off + i].append(x)
        if Q == 4:
            gaps[0].append('v_or_b32 v24, v24, v25'); gaps[1].append('v_or3_b32 v24, v24, v26, v27')
            gaps[2].append(f'v_readfirstlane_b32 s{sC0}, v24')
            gaps[4].insert(0, f's_andn2_b32 s{sC0}, s{sC0}, s{sPASS}\ns_cbranch_scc1 K2_SLOW')
            gaps[5].insert(0, 's_waitcnt vmcnt(30)')
        for i in range(len(mf)):
            room = 2 - sum(cost(x) for x in gaps[i])
            if room > 0 and npre < NPRE and gi - lastvm >= PACE:
                items = mem.pop(0)
                gaps[i] += items; room -= min(2, len(items)); npre += 1; lastvm = gi
            while room > 0:
                if hi and (Q, i) >= (1, 3) and not (Q == 2 and i > 10): x = hi.pop(0)
                elif epi and (epi[0][0] < Q or (epi[0][0] == Q and i >= 2)): x = epi.pop(0)[1]
                else: break
                if isinstance(x, tuple): lastvm = gi
                gaps[i].append(x); room -= cost(x)
            gi += 1
        if reads: gaps[last].insert(0, 's_waitcnt lgkmcnt(0)')
        e.stream(mf, gaps)
    e('s_nop 4')
    for _, x in epi: e.put(x)
    stamp(e, opt, 'pvlast')
    mem += wodma(6) + wodma(7) + [x for kk in range(n1, LD0) for x in fragload('wo', kk, where[kk])] + wodma(8) + wodma(9)
    assert len(mem) - 8 >= NPOST
    e(f's_waitcnt vmcnt({60 - NPOST})')
    for _ in range(NPOST): run(mem.pop(0))
    e(f'''s_lshr_b32 s{sT}, s{sW}, 1
    s_lshl_b32 s{sC0}, s{sTQ}, 1
    s_add_u32 s{sC0}, s{sC0}, s{sT}
    s_lshl_b32 s{sC0}, s{sC0}, 15
    s_and_b32 s{sT}, s{sW}, 1
    s_lshl_b32 s{sC1}, s{sCT}, 1
    s_add_u32 s{sC1}, s{sC1}, s{sT}
    s_lshl_b32 s{sC1}, s{sC1}, 6
    v_lshl_add_u32 v8, v1, 4, s{sC1}
    v_lshl_add_u32 v9, v3, 10, v8
    v_add_u32 v9, s{sC0}, v9
    v_add_u32 v10, 0x4000, v9
    v_add_u32 v12, s{sW8K}, v{L16}
    v_add_u32 v13, 0x10000, v12
    v_add_u32 v14, 0x20000, v12
    s_lshl_b32 s{sT}, s{sT}, 15
    s_lshr_b32 s{sC0}, s{sW}, 1
    s_lshl_b32 s{sC0}, s{sC0}, 11
    s_add_u32 s{sT}, s{sT}, s{sC0}
    v_add_u32 v15, s{sT}, v{L16}
    v_mov_b32 v25, 1
    v_lshlrev_b32 v26, 8, v2
    s_lshr_b32 s{sXB}, s2, 5
    s_lshl_b32 s{sXB}, s{sXB}, 13
    s_lshl_b32 s{sT}, s{sHEAD}, 2
    s_add_u32 s{sXB}, s{sXB}, s{sT}
    s_add_u32 s{sXB}, s{sXB}, {FL_OFF}
    v_and_b32 v24, 7, v2
    s_lshl_b32 s{sT}, s{sW}, 5
    v_lshl_add_u32 v24, v24, 2, s{sT}
    v_lshrrev_b32 v16, 2, v2
    v_and_b32 v17, 3, v2
    v_lshlrev_b32 v17, 7, v17
    v_lshl_add_u32 v16, v16, 12, v17
    s_lshl_b32 s{sT}, s{sCT}, 9
    v_add_u32 v16, s{sT}, v16
    s_add_u32 s{sC1}, s{sOB}, 65536
    v_mov_b32 v28, 1''')
    e.vmwait('ost')
    e('s_barrier')
    e(f'''s_cmp_lg_u32 s{sW}, 0
    s_cbranch_scc1 K2_SIG2
    s_mov_b32 exec_hi, 0
    buffer_store_dword v25, v26, {sr(SWS)}, s{sXB} offen sc1
    s_mov_b64 exec, -1
    K2_SIG2:''')
    stamp(e, opt, 'drain')
    e.vm(f'buffer_load_dwordx4 v[4:7], v8, {sr(SB2)}, 0 offen', 'b2')
    e.vm(f'buffer_load_dwordx4 v[68:71], v9, {sr(SX)}, 0 offen', 'x')
    e.vm(f'buffer_load_dwordx4 v[72:75], v10, {sr(SX)}, 0 offen', 'x')
    poll = f'buffer_load_dword v27, v24, {sr(SWS)}, s{sFL} offen sc1'
    otouch = '' if opt.get('noot') else f'buffer_load_dword v{TD}, v16, {sr(SWS)}, s{sOB} offen sc1\nbuffer_load_dword v{TD}, v16, {sr(SWS)}, s{sC1} offen sc1\n'
    BATCH = int(opt.get('batch', 8))
    nb_ = 0
    while mem:
        if nb_: e.vm(poll, 'poll')
        for _ in range(min(BATCH, len(mem))): run(mem.pop(0))
        if nb_:
            e.vmwait('poll')
            e(f'v_cmp_ne_u32 vcc, v28, v27\ns_nop 4\ns_cbranch_vccnz K2_PB{nb_}\n{otouch}v_mov_b32 v28, -1\nK2_PB{nb_}:')
        if nb_ == 1:
            e(f's_mov_b32 s{sT}, {f2u(-LOG2E):#x}')
            for i in range(4): e(f'v_lshlrev_b32 v{192+2*i}, 16, v{4+i}\nv_and_b32 v{193+2*i}, 0xffff0000, v{4+i}')
            gs = [(G + 8 * a + 4 * q + r, 192 + 4 * a + r, 200 + 8 * a + 4 * q + r) for a in range(2) for q in range(2) for r in range(4)]
            for g, b, t in gs: e(f'v_add_f32 v{g}, v{g}, v{b}')
            for g, b, t in gs: e(f'v_mul_f32 v{t}, s{sT}, v{g}')
            for g, b, t in gs: e(f'v_exp_f32 v{t}, v{t}')
            for g, b, t in gs: e(f'v_add_f32 v{t}, 1.0, v{t}')
            for g, b, t in gs: e(f'v_rcp_f32 v{t}, v{t}')
            for g, b, t in gs: e(f'v_mul_f32 v{g}, v{g}, v{t}')
        nb_ += 1
    stamp(e, opt, 'sent')
    e(f'''v_cmp_ne_u32 vcc, 1, v28
    s_mov_b32 s{sCNT}, 200000
    s_nop 3
    s_cbranch_vccnz K2_RDY
    K2_POLL2:
    {poll}
    s_waitcnt vmcnt(0)
    v_cmp_ne_u32 vcc, 1, v27
    s_sub_u32 s{sCNT}, s{sCNT}, 1
    s_cbranch_scc1 K2_RDY
    s_nop 2
    s_cbranch_vccnz K2_POLL2
    {otouch}
    K2_RDY:''')
    stamp(e, opt, 'wait')
    ACC = 192
    oat = {}
    queue = []
    for kk in range(32):
        if kk in late: queue.append(('wo', kk))
        queue.append(('o', kk))
    def issue_next():
        kind, kk = queue.pop(0)
        sl = [free.pop(0) for _ in range(4)]
        (where if kind == 'wo' else oat)[kk] = sl
        return fragload(kind, kk, sl)
    while len(free) >= 4:
        for it in issue_next(): run(it)
    def ldsread(kk):
        a = AREA[kk]
        return [f'ds_read_b128 {where[kk][j]}, v{12 + (a >> 16)} offset:{(a & 0xffff) + 1024*j}' for j in range(4)]
    e.vmwait('o0')
    stamp(e, opt, 'o1st')
    for kk in range(32):
        mf = []
        for nb in range(4):
            for qb in range(4):
                d = R('v', ACC + 16 * nb + 4 * qb)
                mf.append(mfma(d, where[kk][nb], oat[kk][qb], '0' if kk == 0 else d))
        gaps = {i: [] for i in range(16)}
        nk = kk + 1
        if nk in AREA:
            where[nk] = [free.pop(0) for _ in range(4)]
            for i, x in enumerate(ldsread(nk)): gaps[1 + 2 * i].append(x)
        inflight = e.vmn(f'o{kk}')
        its = []
        while queue and len(free) >= 4 and len(its) < 8 and inflight + 4 <= MAXFLY:
            its += issue_next(); inflight += 4
        for i, it in enumerate(its): gaps[i * (4 if len(its) == 4 else 2)] += it
        if nk < 32: gaps[15].append(lambda nk=nk: e.vmwait(f'o{nk}', f'wo{nk}', extra=' lgkmcnt(0)' if nk in AREA else ''))
        e.stream(mf, gaps)
        free += where[kk] + oat[kk]
    assert not queue
    stamp(e, opt, 'main')
    e('s_nop 4')
    for f in range(16):
        e(f'ds_write_b128 v12, {R("v", ACC + 4*f)} offset:{(f >> 3) * 32768 + (f & 7) * 1024}')
        if f == 11: e('s_waitcnt lgkmcnt(4)')
    for q in range(2):
        for i in range(4): e(f'v_lshlrev_b32 v{32+8*q+2*i}, 16, v{68+4*q+i}\nv_and_b32 v{33+8*q+2*i}, 0xffff0000, v{68+4*q+i}')
    e('s_waitcnt lgkmcnt(0)\ns_barrier')
    for q in range(2):
        for a in range(2):
            for s_ in range(4): e(f'ds_read_b128 {R("v", 128 + 32*q + 16*a + 4*s_)}, v15 offset:{s_*8192 + a*4096 + q*1024}')
        if q == 0: e('s_waitcnt lgkmcnt(4)')
    for q in range(2):
        e(f's_waitcnt lgkmcnt({8 - 8*q})')
        for a in range(2):
            b = 128 + 32 * q + 16 * a
            for r in range(4): e(f'v_add_f32 v{b+r}, v{b+r}, v{b+4+r}\nv_add_f32 v{b+8+r}, v{b+8+r}, v{b+12+r}')
            for r in range(4): e(f'v_add_f32 v{b+r}, v{b+r}, v{b+8+r}')
            for r in range(4): e(f'v_fma_f32 v{32+8*q+4*a+r}, v{b+r}, v{G+8*a+4*q+r}, v{32+8*q+4*a+r}')
        for i in range(4): e(f'v_cvt_pk_bf16_f32 v{48+4*q+i}, v{32+8*q+2*i}, v{33+8*q+2*i}')
        e(f'buffer_store_dwordx4 {R("v", 48+4*q)}, v{9+q}, {sr(SOUT)}, 0 offen')
    if opt.get('ts'):
        e(f's_waitcnt vmcnt(0)\ns_memrealtime s[{64+2*NSTAMP}:{65+2*NSTAMP}]\ns_memtime s[46:47]\ns_waitcnt lgkmcnt(0)')
        srd(e, 28, pWS, TS_OFF, 0x20000)
        e('v_lshrrev_b32 v2, 6, v0\ns_lshl_b32 s3, s2, 2\nv_add_u32 v2, s3, v2\nv_lshlrev_b32 v2, 6, v2')
        for k, s_ in enumerate([62] + [64 + 2 * i for i in range(NSTAMP)] + [46, 64 + 2 * NSTAMP]):
            e(f'v_mov_b32 v3, s{s_}\nbuffer_store_dword v3, v2, s[28:31], 0 offen offset:{4*k}')
    e('K2_END:\ns_endpgm')
    e(f'''K2_SPIN1:
    s_mov_b32 s{sCNT}, 200000
    K2_SPIN1L:
    buffer_load_dword v27, v24, {sr(SWS)}, s{sFL} offen offset:128 sc1
    s_waitcnt vmcnt(0)
    v_cmp_ne_u32 vcc, 1, v27
    s_sub_u32 s{sCNT}, s{sCNT}, 1
    s_cbranch_scc1 K2_BACK1
    s_nop 2
    s_cbranch_vccnz K2_SPIN1L
    s_branch K2_BACK1''')
    e('K2_BCAST:\nv_lshlrev_b32 v26, 8, v2')
    for i in range(4): e(f's_mov_b32 s{sT}, {FL_OFF + 128 + i * 16384}\nbuffer_store_dword v25, v26, {sr(SWS)}, s{sT} offen sc1')
    e('s_branch K2_BACK0')
    e(f'''K2_SLOW:
    s_mov_b32 s{sPASS}, 1
    s_waitcnt vmcnt(0) lgkmcnt(0)
    s_nop 7
    s_barrier
    s_branch K2_TOP
    K2_MAXP:
    s_mov_b32 s{sK}, s{sW8K}
    s_mov_b32 s{sCNT}, 16
    s_waitcnt vmcnt(0)''')
    for qb in range(4): e(f'v_mov_b32 v{24+qb}, 0xff800000')
    e('K2_MAXL:\ns_barrier')
    for it in kdma(0): run(it)
    e('s_waitcnt vmcnt(0)\ns_barrier')
    for kb in range(8):
        for x in kread(0, kb, 0): e(x)
        e('s_waitcnt lgkmcnt(0)')
        for qb in range(4):
            for x in qk(0, qb, qb, '0'): e(x)
        e('s_nop 7')
        for qb in range(4): e(f'v_max3_f32 v{24+qb}, v{24+qb}, v{S+4*qb}, v{S+4*qb+1}')
        for qb in range(4): e(f'v_max3_f32 v{24+qb}, v{24+qb}, v{S+4*qb+2}, v{S+4*qb+3}')
    e(f's_sub_u32 s{sCNT}, s{sCNT}, 1\ns_cmp_lg_u32 s{sCNT}, 0\ns_cbranch_scc1 K2_MAXL')
    rowmax_to_ci(24)
    e(f's_mov_b32 s{sK}, s{sW8K}\ns_barrier')
    for it in kdma(0): run(it)
    e(f's_add_u32 s{sK}, s{sK}, 32768\ns_waitcnt vmcnt(0)\ns_barrier')
    for x in kread(0, 0, 0): e(x)
    e('s_waitcnt lgkmcnt(0)\nK2_LAST:\ns_branch K2_ATT')
    return kdesc('attn_kernel', 512, 256, 102)

def build(opt):
    e = E()
    head = open(f'cdna_kernels/{NAME}.s.ref').read().split('; Override launch')[0]
    head += '''; @launch kernel=prep_kernel grid=(284,1,1) block=(256,1,1) lds=8192
; @launch kernel=attn_kernel grid=(256,1,1) block=(256,1,1) lds=163840
'''
    e('.amdgcn_target "amdgcn-amd-amdhsa--gfx950"\n.text')
    d = k1(e, opt) + k2(e, opt)
    return head + e.text() + '.section .rodata,"a"\n' + d

if __name__ == '__main__':
    out = sys.argv[1] if len(sys.argv) > 1 else f'cdna_kernels/{NAME}.s'
    opt = dict(a.split('=') if '=' in a else (a, 1) for a in sys.argv[2:])
    txt = build(opt)
    open(out, 'w').write(txt)
    import chk
    errs = chk.check(txt)
    for x in errs[:40]: print(x)
    print(f'{out}: {len(txt)} bytes, {len(errs)} hazard problems')
```

```python
import sys, math
sys.path.insert(0, 'dev')
from gen_base import *

H_OFF, WOP_OFF, O_OFF, W2P_OFF, TS_OFF = 0x400000, 0xC00000, 0x1000000, 0x2000000, 0x2400000
FL_OFF = 0x300000
H_SIZE, W2P_SIZE, WS_SIZE = 128 * 56 * 1024, 8 * 56 * 4096, 0x2400000
NSTAMP = 11
KN = NAME + '_kernel'

TSETS = {'a': 'start load0 m2 m3 qproj epi1 qk0 it0 loop wait main'.split(),
         'c': 'start iss0 load0 m0 m1 m2 m3 q0 q1 q2 qproj'.split(),
         'b': 'start qk0 it0 it2 mid loop pvlast drain sent o1st main'.split()}
def stamp(e, opt, name):
    if opt.get('ts') and name in TSETS[opt['ts']]:
        k = TSETS[opt['ts']].index(name)
        e(f's_memtime s[{64+2*k}:{65+2*k}]')

def k2(e, opt):
    e.vml = []
    khead(e, KN)
    SK, SV, SWQ, SW1, SWS, SH, SC, SD, SDBG = 4, 8, 12, 16, 20, 24, 28, 32, 40
    SX, SOUT, SB2 = 12, 16, 24
    pX, pK, pV, pWQ, pWO, pW1, pW2, pB2, pOUT, pDBG, pWS = 36, 38, 40, 42, 44, 48, 52, 54, 56, 58, 60
    sC0, sC1, sFL = 46, 47, 50
    sHEAD, sW, sW1K, sW8K, sK, sV, sCNT, sT, sPASS, sXB, sQB, sMA, sMB, sTQ = range(88, 102)
    sCT, sRB, sWO, sOB = 38, 39, 48, 49
    ONES, KA, VA, KD, VD, IDX, L16 = 4, 8, 12, 20, 21, 22, 23
    S, CI, L, G, M2, P = 32, 48, 64, 80, 96, 128
    aO, aQ, aK, aV = 0, 128, 192, 224
    WQA, WQD, W1D, GC0, CQ = 24, 8, 9, 14, (16, 28)
    GR, SXA, C1, W1A, OQ, XD, XA, AG, AD, AM, ACW, ACR, TDM, B1P, CB, MR = 128, 144, 148, 156, 160, 176, 180, 188, 189, 190, 191, 192, 194, 196, 216, 248
    pB1, sGC, sHA, sRX, sRQ, sRW = 50, 3, 39, 46, 47, 51
    RLD, RLA, T9, T15, FZA, KVT, KVT2 = 10, 11, 9, 15, 212, 195, 214
    RLB, XRG, QSP = int(opt.get('rlb', 21)), int(opt.get('xrg', 14)), int(opt.get('qsp', 4))
    AF, HA, QA = 32, 64, 128
    EB = 0x20000
    CSL, CQL = EB + 6144, EB + 6144
    ORING = int(opt.get('oring', 5))
    ND = 6
    ST, sTO, sTS, sTZ = 28, 44, 45, 51
    TD, TV, WTV = 29, 30, 31
    MSC = '' if opt.get('mplain') else ' sc1'
    OSC = '' if opt.get('oplain') else ' sc1'
    MAXFLY = int(opt.get('maxfly', 40))
    def sr(b): return f's[{b}:{b+3}]'
    e(f'''s_cmp_ge_u32 s2, 256
    s_cbranch_scc1 K2_END
    s_mov_b32 s{sPASS}, 0
    K2_TOP:
    s_load_dwordx16 s[36:51], s[0:1], 0
    s_load_dwordx8 s[52:59], s[0:1], 64
    s_load_dwordx2 s[60:61], s[0:1], 96''')
    if opt.get('ts'): e('s_memrealtime s[62:63]')
    stamp(e, opt, 'start')
    e(f'''s_getpc_b64 s[8:9]
    K2_PC:
    s_lshr_b32 s{sT}, s2, 3
    s_lshl_b32 s{sT}, s{sT}, 11
    v_lshrrev_b32 v4, 4, v0
    v_lshl_add_u32 v4, v4, 7, s{sT}
    v_mov_b32 v5, 0
    v_min_u32 v4, K2_LAST - K2_PC, v4
    v_lshl_add_u64 v[4:5], v[4:5], 0, s[8:9]''')
    e.vm(f'global_load_dword v{TDM}, v[4:5], off', 'touch')
    e(f'''v_lshrrev_b32 v1, 6, v0
    v_and_b32 v2, 63, v0
    s_lshr_b32 s{sQB}, s2, 5
    v_readfirstlane_b32 s{sW}, v1
    v_lshrrev_b32 v1, 4, v2
    v_and_b32 v3, 15, v2
    v_xor_b32 v4, v1, v3
    v_lshlrev_b32 v4, 4, v4
    v_lshl_add_u32 v{XD}, v1, 10, v4
    s_lshl_b32 s{sQB}, s{sQB}, 2
    s_add_u32 s{sQB}, s{sQB}, s{sW}
    s_lshl_b32 s{sXB}, s{sQB}, 16
    s_lshl_b32 s{sQB}, s{sQB}, 2
    s_lshl_b32 s{sW8K}, s{sW}, 13
    s_lshl_b32 s{sW1K}, s{sW}, 10''')
    for j in range(1, 4): e(f'v_xor_b32 v{XD+j}, {64*j}, v{XD}\nv_add_u32 v{XD+j}, {3072*j}, v{XD+j}')
    e(f'''s_and_b32 s{sHEAD}, s2, 7
    s_lshl_b32 s{sHEAD}, s{sHEAD}, 2
    s_lshr_b32 s{sT}, s2, 3
    s_and_b32 s{sT}, s{sT}, 3
    s_add_u32 s{sHEAD}, s{sHEAD}, s{sT}
    v_lshrrev_b32 v10, 3, v2
    s_lshl_b32 s{sT}, s{sW}, 3
    v_add_u32 v10, s{sT}, v10
    v_mul_u32_u24 v10, 3584, v10
    v_and_b32 v11, 1, v1
    s_and_b32 s{sMA}, s{sW}, 1
    s_lshl_b32 s{sMA}, s{sMA}, 1
    v_or_b32 v11, s{sMA}, v11
    v_lshlrev_b32 v11, 1, v11
    v_and_b32 v16, 7, v2
    v_xor_b32 v11, v11, v16
    v_lshl_add_u32 v{W1D}, v11, 4, v10
    s_lshl_b32 s{sMB}, s{sHEAD}, 7
    s_waitcnt lgkmcnt(0)''')
    stamp(e, opt, 'karg')
    srd(e, SC, pX, f's{sXB}', 65536)
    ROT = opt.get('rot', '5')
    if ROT:
        e(f'''s_lshr_b32 s{sTQ}, s2, 5
        s_xor_b32 s{sTQ}, s{sTQ}, s{sHEAD}
        s_and_b32 s{sTQ}, s{sTQ}, {3 if ROT == 1 else int(ROT) & 3}
        s_lshl_b32 s{sRX}, s{sTQ}, 8
        s_lshl_b32 s{sRQ}, s{sTQ}, 20''')
    W1L = [EB, EB + 16384, 98304, 98304 + 16384]
    def slot(p): return (((p + 2) % 6) >> 1) * 32768 + ((p + 2) & 1) * 4096
    def xdma(p):
        cc, qb = divmod(p, 4)
        return [([f's_add_u32 m0, s{sW8K}, {slot(p)}', (f's_xor_b32 s{sCNT}, s{sRX}, ' if ROT else f's_mov_b32 s{sCNT}, ') + f'{qb * 16384 + cc * 256}'] if j == 0 else []) +
                [(f'buffer_load_dwordx4 v{XD+j}, {sr(SC)}, s{sCNT} offen offset:{1024*j} lds', f'x{p}')] for j in range(4)]
    def xread(p):
        a = slot(p)
        return [f'ds_read_b128 {R("a", 16*p + 4*ks)}, v{XA + 4*(a >> 16) + ks} offset:{a & 0xffff}' for ks in range(4)]
    def w1dma(cc, t):
        so = [f's_mov_b32 s{sT}, {(128*cc + 32*t) * 3584}']
        if ROT: so = [f's_add_u32 s{sT}, s{sT}, {32 * 3584}'] if t else [f's_xor_b32 s{sT}, s{sRX}, {cc << 8}\ns_mul_i32 s{sT}, s{sT}, {3584 // 2}']
        return [f's_add_u32 m0, s{sW1K}, {W1L[cc] + t * 4096}'] + so + [
                (f'buffer_load_dwordx4 v{W1D}, {sr(SW1)}, s{sT} offen lds', f'w1_{cc}')]
    def wqdma(cc, half):
        return [([f's_add_u32 m0, s{sW8K}, {cc * 32768 + half * 4096}'] if j == 0 else []) +
                [(f's_xor_b32 s{sCNT}, s{sRQ}, ' if ROT else f's_mov_b32 s{sCNT}, ') + f'{(128*cc + 16*half + 4*j) * 8192 - 1024*j}',
                 (f'buffer_load_dwordx4 v{WQD}, {sr(SWQ)}, s{sCNT} offen offset:{1024*j} lds', f'wq{cc}')] for j in range(4)]
    def succ(p): return xdma(p + 6) if p < 10 else wqdma(*divmod(p - 10, 2))
    def kvdma(lds, vd, srd_, so, tag):
        out = []
        for t in range(8):
            grp, j = divmod(t, 4)
            it = [f's_add_u32 m0, s{sW8K}, {lds + grp * 4096}'] if j == 0 else []
            it.append((f'buffer_load_dwordx4 v{vd}, {sr(srd_)}, s{so} offen offset:{1024*j} lds', tag))
            if j == 3: it.append(f's_add_u32 s{so}, s{so}, {4096 if grp == 0 else 28672}')
            out.append(it)
        return out
    def kdma(slot, tag='kv'): return kvdma(slot * 32768, KD, SK, sK, tag)
    def vdma(slot, tag='kv'): return kvdma(65536 + slot * 32768, VD, SV, sV, tag)
    def run(items):
        for it in items:
            if isinstance(it, tuple) and e.l[-1].strip().startswith('s_add_u32 m0'): e('s_nop 0')
            e.put(it)
    def runall(its):
        for it in its: run(it)
    runall(xdma(0))
    srd(e, SW1, pW1, f's{sMB}', 0)
    srd(e, SK, pB1, f's{sMB}', 0)
    e(f'''s_sub_u32 s{SW1+2}, {512*3584}, s{sMB}
    s_cmp_lt_u32 s{sHEAD}, 28
    s_cselect_b32 s{SW1+2}, s{SW1+2}, 0
    s_cselect_b32 s{SK+2}, 128, 0''')
    for t in range(4): run(w1dma(0, t))
    e(f'''s_lshl_b32 s{sT}, s{sMA}, 5
    v_lshl_add_u32 v10, v1, 3, s{sT}
    v_xor_b32 v11, 64, v10''')
    for i in range(4): e.vm(f'buffer_load_dwordx2 v[{B1P+2*i}:{B1P+2*i+1}], v{10 + (i >> 1)}, {sr(SK)}, 0 offen offset:{32*(i&1)}', 'b1')
    NP0 = int(opt.get('np0', 2))
    for p in range(1, NP0): runall(xdma(p))
    stamp(e, opt, 'iss0')
    srd(e, SWS, pWS, 0, WS_SIZE)
    e(f'''s_lshl_b32 s{sFL}, s{sHEAD}, 3
    s_lshr_b32 s{sT}, s2, 5
    s_add_u32 s{sFL}, s{sFL}, s{sT}
    s_lshl_b32 s{sFL}, s{sFL}, 8
    s_add_u32 s{sFL}, s{sFL}, {FL_OFF}
    v_lshlrev_b32 v{FZA}, 2, v2
    v_mov_b32 v{FZA+1}, 0
    v_lshlrev_b32 v{L16}, 4, v2
    s_lshl_b32 s{sT}, s{sQB}, 9
    v_lshl_add_u32 v{KVT}, v3, 7, s{sT}''')
    e(f's_lshl_b32 s{sT}, s{sHEAD}, 8')
    srd(e, SWQ, pWQ, f's{sT}', 0)
    e(f's_sub_u32 s{SWQ+2}, {512*8192}, s{sT}')
    e(f's_lshl_b32 s{sT}, s{sHEAD}, 19')
    srd(e, SK, pK, f's{sT}', 0x80000)
    srd(e, SV, pV, f's{sT}', 0x80000)
    srd(e, SH, pWS, H_OFF, H_SIZE)
    e(f's_cmp_lt_u32 s{sHEAD}, 28\ns_cselect_b32 s{SH+2}, s{SH+2}, 0')
    srd(e, SDBG, pDBG, 0, 256)
    e(f's_or_b32 s{sT}, s{sPASS}, s{sW}\ns_cmp_eq_u32 s{sT}, 0\ns_cselect_b32 s{SDBG+2}, 256, 0')
    srd(e, SD, pWS, W2P_OFF, W2P_SIZE)
    e(f's_lshr_b32 s{sT}, s{sW}, 1\ns_lshl_b32 s{sT}, s{sT}, 8\ns_add_u32 s{sT}, s{sT}, s2\ns_cmp_lt_u32 s{sT}, 224\ns_cselect_b32 s{SD+2}, s{SD+2}, 0')
    e(f'''v_xor_b32 v4, v1, v3
    v_lshlrev_b32 v4, 4, v4
    v_lshl_add_u32 v4, v3, 8, v4
    v_add_u32 v{XA}, s{sW8K}, v4''')
    for ks in range(1, 4): e(f'v_xor_b32 v{XA+ks}, {64*ks}, v{XA}')
    for ks in range(4): e(f'v_add_u32 v{XA+4+ks}, 0x10000, v{XA+ks}')
    e(f'''s_lshl_b32 s{sT}, s{sW}, 5
    v_add_u32 v10, s{sT}, v1
    v_lshlrev_b32 v11, 2, v1
    v_xor_b32 v11, v11, v3
    v_lshlrev_b32 v11, 4, v11
    v_lshl_add_u32 v{WQD}, v10, 13, v11
    s_lshl_b32 s{sT}, s{sW}, 2
    v_add_u32 v10, s{sT}, v1
    v_xor_b32 v11, v10, v3
    v_lshlrev_b32 v11, 4, v11
    v_lshl_add_u32 v{KD}, v1, 8, v11
    v_and_b32 v11, 7, v10
    v_lshlrev_b32 v11, 1, v11
    v_xor_b32 v11, v11, v3
    v_lshlrev_b32 v11, 4, v11
    v_lshl_add_u32 v{VD}, v1, 8, v11
    s_mov_b32 s{sK}, s{sW8K}
    s_mov_b32 s{sV}, s{sW8K}''')
    e(f'''v_lshrrev_b32 v10, 2, v3
    v_and_b32 v11, 3, v2
    v_lshl_add_u32 v16, v1, 3, v10
    v_xor_b32 v17, s{sW}, v10
    v_lshl_add_u32 v17, v17, 2, v11
    v_lshlrev_b32 v17, 4, v17
    v_lshl_add_u32 v{WQA}, v16, 8, v17''')
    for i in range(1, 4): e(f'v_xor_b32 v{WQA+i}, {64*i}, v{WQA}')
    e(f'''v_lshrrev_b32 v17, 1, v10
    v_and_b32 v18, 1, v1
    v_lshl_add_u32 v17, v18, 1, v17
    v_xor_b32 v17, s{sMA}, v17
    v_lshlrev_b32 v18, 7, v16
    v_lshl_add_u32 v18, v11, 3, v18
    v_add_u32 v18, 98304, v18
    v_lshl_add_u32 v{W1A}, v17, 5, v18''')
    for i in range(1, 4): e(f'v_xor_b32 v{W1A+i}, {32*i}, v{W1A}')
    e(f'''v_and_b32 v16, 2, v2
    v_cmp_eq_u32 vcc, 0, v16
    v_mov_b32 v17, 0x3f803f80
    v_and_b32 v16, 1, v2
    v_cndmask_b32 v{ONES}, 0, v17, vcc
    v_cmp_eq_u32 vcc, 0, v16
    v_mov_b32 v{ONES+1}, v{ONES}
    v_mov_b32 v{ONES+2}, v{ONES}
    v_mov_b32 v{ONES+3}, v{ONES}
    v_mov_b32 v17, 0x44444444
    v_mov_b32 v{IDX}, 0xeeeeeeee
    v_cndmask_b32 v{IDX}, v{IDX}, v17, vcc''')
    for q in range(4):
        e(f'v_cmp_eq_u32 vcc, {q}, v10\ns_nop 1\nv_cndmask_b32 v{OQ+4*q}, 0, v{ONES}, vcc')
        for r in range(1, 4): e(f'v_mov_b32 v{OQ+4*q+r}, v{OQ+4*q}')
    e(f'''s_add_u32 s{sT}, s{sW8K}, {EB}
    v_add_u32 v{AG}, s{sT}, v{L16}
    v_lshl_add_u32 v16, v10, 4, v3
    v_lshl_add_u32 v16, v16, 2, v11
    v_lshl_add_u32 v16, v1, 8, v16
    v_lshl_add_u32 v{AD}, v16, 2, s{sT}
    v_lshl_add_u32 v{AM}, v3, 4, s{sT}
    s_lshl_b32 s{sT}, s{sMA}, 6
    s_add_u32 s{sT}, s{sT}, {CSL}
    v_lshl_add_u32 v{ACW}, v3, 2, s{sT}
    v_lshl_add_u32 v{ACR}, v1, 4, s{sT}
    v_xor_b32 v{ACR+1}, 128, v{ACR}''')
    e(f'''v_lshrrev_b32 v16, 2, v2
    v_lshlrev_b32 v17, 4, v11
    v_lshl_add_u32 v16, v16, 7, v17
    s_add_u32 s{sT}, s{sW8K}, {EB}
    v_add_u32 v{RLA}, s{sT}, v16
    v_lshrrev_b32 v16, 3, v2
    v_and_b32 v17, 7, v2
    v_lshlrev_b32 v17, 4, v17
    v_lshl_add_u32 v{RLD}, v16, 10, v17''')
    for r in (SXA, SXA + 2, C1, C1 + 2, C1 + 4, C1 + 6, CQ[0], CQ[0] + 2, CQ[1], CQ[1] + 2): e(f'v_mov_b64 v[{r}:{r+1}], 0')
    c0 = -2 * math.sqrt(2 / math.pi) * LOG2E
    e(f'v_mov_b32 v{GC0}, {f2u(c0):#x}\ns_mov_b32 s{sGC}, {f2u(c0 * 0.044715):#x}')
    e(f'''s_mul_i32 s{sHA}, s{sQB}, {56*1024}
    s_lshl_b32 s{sT}, s{sHEAD}, 12
    s_add_u32 s{sHA}, s{sHA}, s{sT}
    s_lshl_b32 s{sT}, s{sMA}, 10
    s_add_u32 s{sHA}, s{sHA}, s{sT}
    s_xor_b32 s{sXB}, s{sHA}, 2048
    s_mov_b32 s{sTQ}, s{sHEAD}
    s_lshr_b32 s{sCT}, s2, 5
    s_lshr_b32 s{sT}, s{sW}, 1
    s_lshl_b32 s{sMB}, s{sTQ}, 1
    s_add_u32 s{sMB}, s{sMB}, s{sT}
    s_mul_i32 s{sMB}, s{sMB}, {56*2048}
    s_add_u32 s{sMB}, s{sMB}, {H_OFF}
    s_and_b32 s{sT}, s{sW}, 1
    s_lshl_b32 s{sT}, s{sT}, 11
    s_mul_i32 s{sMA}, s{sCT}, {56*4096}
    s_add_u32 s{sMA}, s{sMA}, s{sT}
    s_add_u32 s{sMA}, s{sMA}, {W2P_OFF}
    s_lshl_b32 s{sT}, s{sW}, 17
    s_lshl_b32 s{sWO}, s{sCT}, 19
    s_add_u32 s{sWO}, s{sWO}, s{sT}
    s_add_u32 s{sWO}, s{sWO}, {WOP_OFF}
    s_lshl_b32 s{sOB}, s{sTQ}, 19
    s_add_u32 s{sOB}, s{sOB}, s{sT}
    s_add_u32 s{sOB}, s{sOB}, {O_OFF}''')

    def aread(n):
        out = []
        for ks in range(4):
            for u in range(2):
                d = AF + 16 * (n & 1) + 4 * ks + 2 * u
                if n < 16: out.append(f'ds_read_b64_tr_b16 v[{d}:{d+1}], v{W1A + (n & 3)} offset:{W1L[n >> 2] - 98304 + (32*ks+4*u)*128}')
                else:
                    cc, b = divmod(n - 16, 8)
                    out.append(f'ds_read_b64_tr_b16 v[{d}:{d+1}], v{WQA + (b >> 1)} offset:{(cc&1)*32768 + (32*ks+4*u)*256 + 8*(b & 1)}')
        return out
    def cost(x):
        if callable(x): return 0
        if isinstance(x, tuple): return 1
        if x.startswith('s_'): return 0
        return 2 if x.startswith(('v_exp', 'v_rcp', 'v_sqrt')) else 1
    stamp(e, opt, 'pre')
    for p in range(NP0, 6): runall(xdma(p))
    for t in range(4): run(w1dma(1, t))
    stamp(e, opt, 'iss')
    for p in range(4):
        e.vmwait(f'x{p}')
        if p in (0, 3): stamp(e, opt, f'x{p}')
        if p == 3:
            e('s_barrier')
            stamp(e, opt, 'load0')
            for x in aread(0): e(x)
        for x in xread(p): e(x)
    e('s_waitcnt lgkmcnt(0)')

    def rldma(srd_, vd, n):
        return [f's_add_u32 m0, s{sW8K}, {EB + n * 1024}', f's_add_u32 s{sT}, s{sC0}, {n * 8192}',
                (f'buffer_load_dwordx4 v{vd}, {sr(srd_)}, s{sT} offen lds', 'rl')]
    def rlread(c, d, va): return [f'ds_read_b64_tr_b16 {c}[{d+4*nb+2*u}:{d+4*nb+2*u+1}], v{va} offset:{u*2048 + 64*(nb>>1) + 8*(nb&1)}' for nb in range(4) for u in range(2)]
    def rlstore(c, d, srd_): return [[(f'buffer_store_dwordx4 {R(c, d+4*nb)}, v{L16}, {sr(srd_)}, s{sC1} offen offset:{1024*nb} sc1', 'hst')] for nb in range(4)]
    def rb16(d, s_): return [f'v_cvt_pk_bf16_f32 v{d}, v{s_}, v{s_}', f'v_and_b32 v{d}, 0xffff0000, v{d}']
    TM, TR2, TA_, TB_, TC_, TS_ = 206, 207, 208, 209, 210, 211
    eps, k512 = f'{f2u(1e-5):#x}', f'{f2u(1/512):#x}'
    def rstd(dst, var): return rb16(TB_, var) + [f'v_add_f32 v{TB_}, {eps}, v{TB_}'] + rb16(TB_, TB_) + [f'v_sqrt_f32 v{TB_}, v{TB_}'] + rb16(TB_, TB_) + [f'v_rcp_f32 v{dst}, v{TB_}']
    fq = [('AT', 8, 0)]
    for i in range(4):
        for k in range(2): fq += [f'v_lshlrev_b32 v{CB+8*i+4+2*k}, 16, v{B1P+2*i+k}', f'v_and_b32 v{CB+8*i+5+2*k}, 0xffff0000, v{B1P+2*i+k}']
    fq += [('AT', 12, 26)] + [f'ds_write_b128 v{AG}, {R("v", GR+4*q)} offset:{1024*q}' for q in range(4)] + [f'ds_read_b32 v{TS_}, v{AD}']
    fq += [('AT', 12, 32), f'v_add_f32 v{TM}, v{SXA}, v{SXA+1}', f'v_mul_f32 v{TM}, {k512}, v{TM}', f'v_mul_f32 v{TA_}, v{TM}, v{TM}']
    fq += rb16(12, TM) + [('AT', 13, 0), f'v_mul_f32 v{TS_}, {k512}, v{TS_}', f'v_sub_f32 v{TA_}, v{TS_}, v{TA_}', f'v_max_f32 v{TA_}, 0, v{TA_}']
    fq += rstd(TC_, TA_) + [f'v_mul_f32 v{TA_}, v{TA_}, v{TC_}', f'v_mul_f32 v{TA_}, v{TA_}, v{TC_}'] + rstd(TR2, TA_)
    fq += [f'v_mul_f32 v13, {f2u(LOG2E / math.sqrt(128)):#x}, v{TC_}', f'v_mul_f32 v{TR2}, v{TR2}, v{TC_}', f'ds_write_b64 v{AG}, v[{TM}:{TM+1}] offset:4096']
    fq += [f'ds_read_b64 v[{MR+2*q}:{MR+2*q+1}], v{AM} offset:{4096 + 256*q}' for q in range(4)]
    fq += [f'v_add_f32 v{TA_}, v{C1}, v{C1+1}', f'v_add_f32 v{TB_}, v{C1+4}, v{C1+5}', f'ds_write_b32 v{ACW}, v{TA_}', f'ds_write_b32 v{ACW}, v{TB_} offset:64', ('BY', 14)]
    fq += [('AT', 15, 1)] + [f'ds_read_b128 {R("v", CB+8*i)}, v{ACR + (i >> 1)} offset:{64*(i&1)}' for i in range(4)]
    fq += [('AT', 15, 11), 's_waitcnt lgkmcnt(0)']
    for i in range(4):
        if i == 3: fq.append(('AT', 16, 8))
        for q in range(4):
            us = [HA + 16 * i + 4 * q + r for r in range(4)]
            fq += [f'v_fma_f32 v{u}, -v{MR+2*q}, v{CB+8*i+r}, v{u}' for r, u in enumerate(us)]
            fq += [f'v_fma_f32 v{u}, v{u}, v{MR+2*q+1}, v{CB+8*i+4+r}' for r, u in enumerate(us)]
        fq.append(('BY', (20, 21, 21, 22)[i]))
    tm = [0, WQD, T9, T15]
    fq.append(('AT', int(opt.get('wq3', 18)) + 2, 0))
    for q in range(4):
        for t in range(2):
            U0 = HA + 32 * t + 4 * q
            for h in range(2):
                pr = [(U0 + 16 * h + r, tm[r]) for r in range(4)]
                fq += [f'v_mul_f32 v{x}, v{u}, v{u}' for u, x in pr] + [f'v_fma_f32 v{x}, v{x}, s{sGC}, v{GC0}' for u, x in pr]
                fq += [f'v_mul_f32 v{x}, v{x}, v{u}' for u, x in pr] + [f'v_exp_f32 v{x}, v{x}' for u, x in pr]
                fq += [f'v_add_f32 v{x}, 1.0, v{x}' for u, x in pr] + [f'v_rcp_f32 v{x}, v{x}' for u, x in pr]
                fq += [f'v_mul_f32 v{x}, v{x}, v{u}' for u, x in pr]
                fq += [f'v_cvt_pk_bf16_f32 v{U0+2*h+k}, v{tm[2*k]}, v{tm[2*k+1]}' for k in range(2)]
            fq.append((f'buffer_store_dwordx4 {R("v", U0)}, v{L16}, {sr(SH)}, s{(sHA, sXB)[t]} offen offset:{1024*(q&1)} sc1', 'hst'))
            if (q, t) == (0, 0):
                tm = [U0 + 16 + r for r in range(4)]
        if q == 1: fq += [f's_add_u32 s{sHA}, s{sHA}, {56*2048}', f's_add_u32 s{sXB}, s{sXB}, {56*2048}']
    MS = [HA, HA + 2, HA + 32, HA + 34]
    pq = [('AT', 40, 4), f's_lshl_b32 s{sT}, s{sW}, 7', f's_add_u32 s{sT}, s{sT}, {CQL}', f'v_lshl_add_u32 v{T9}, v3, 2, s{sT}', f'v_lshl_add_u32 v{T15}, v1, 4, s{sT}',
          f's_add_u32 s{sT}, s{sW8K}, {EB}', f'v_add_u32 v{RLD}, s{sT}, v{L16}', f'v_lshl_add_u32 v{RLA}, v3, 4, s{sT}', f'ds_write_b64 v{RLD}, v[12:13]']
    pq += [f'ds_read_b64 v[{MS[q]}:{MS[q]+1}], v{RLA} offset:{256*q}' for q in range(4)]
    pq += [('AT', 41, 12), f'v_add_f32 v{CQ[0]}, v{CQ[0]}, v{CQ[0]+1}', f'v_add_f32 v{CQ[1]}, v{CQ[1]}, v{CQ[1]+1}',
           f'ds_write_b32 v{T9}, v{CQ[0]}', f'ds_write_b32 v{T9}, v{CQ[1]} offset:64', ('BY', 43), f'v_xor_b32 v{T9}, 128, v{T15}',
           f'v_xor_b32 v{RLD}, 256, v{T15}', f'v_xor_b32 v{RLA}, 384, v{T15}']
    CSA = [T15, T9, RLD, RLA]
    def csread(i): return [f'ds_read_b128 {R("v", AF + 8*i + 4*hb)}, v{CSA[i]} offset:{64*hb}' for hb in range(2)]
    pq += [('AT', 47, 1)] + csread(0) + csread(1)
    rlw2 = [f's_lshl_b32 s{sT}, s2, 1', f's_add_u32 s{sT}, s{sT}, s{sW}', f's_and_b32 s{sT}, s{sT}, 7', f's_lshr_b32 s{sCNT}, s2, 2',
            f's_lshl_b32 s{sC0}, s{sCNT}, 8', f's_add_u32 s{sC0}, s{sC0}, s{sT}', f's_lshl_b32 s{sC0}, s{sC0}, 7',
            f's_mul_i32 s{sC1}, s{sT}, 56', f's_add_u32 s{sC1}, s{sC1}, s{sCNT}', f's_lshl_b32 s{sC1}, s{sC1}, 12',
            f's_mov_b32 s{SC}, s{pW2}\ns_mov_b32 s{SC+1}, s{pW2+1}', f's_mov_b32 s{SC+2}, s{SD+2}']
    rlwo = [f's_and_b32 s{sT}, s2, 1', f's_lshl_b32 s{sT}, s{sT}, 2', f's_add_u32 s{sT}, s{sT}, s{sW}', f's_lshr_b32 s{sCNT}, s2, 1',
            f's_lshl_b32 s{sC0}, s{sCNT}, 8', f's_add_u32 s{sC0}, s{sC0}, s{sT}', f's_lshl_b32 s{sC0}, s{sC0}, 7',
            f's_lshl_b32 s{sC1}, s{sT}, 7', f's_add_u32 s{sC1}, s{sC1}, s{sCNT}', f's_lshl_b32 s{sC1}, s{sC1}, 12', f's_add_u32 s{sC1}, s{sC1}, {WOP_OFF}',
            f's_mov_b32 s{SWQ}, s{pWO}', f's_mov_b32 s{SWQ+1}, s{pWO+1}', f's_mov_b32 s{SWQ+2}, {4096 * 1024}']
    K0B, K1B, V0B, RLR = int(opt.get('k0b', 23)), int(opt.get('k1b', 31)), int(opt.get('v0b', 39)), int(opt.get('rlr', 34))
    WQB = [0, int(opt.get('wq1', 14)), int(opt.get('wq2', 16)), int(opt.get('wq3', 18))]
    vq = []
    for p in range(16):
        vq += [(max(0, p - 3, WQB[(p - 10) >> 1] if p >= 10 else 0), it) for it in succ(p)]
        if p == 3: vq += [(0, w1dma(2, t)) for t in range(4)]
        if p == 6: vq += [(0, w1dma(3, t)) for t in range(4)]
        if p == 10:
            if opt.get('kvt'): vq += [(0, [(f'buffer_load_dword v{TDM}, v{KVT}, {sr(s_)}, 0 offen', 'touch')]) for s_ in (SK, SV)]
            vq.append((0, [(f'buffer_load_dword v{TDM}, v{L16}, {sr(SDBG)}, 0 offen sc1', 'touch')]))
    vq += [(WQB[3], it) for h in range(2) for it in wqdma(3, h)]
    vq += [(17, [f's_cmp_eq_u32 s{sPASS}, 0\ns_cselect_b32 s{sT}, s{sFL}, {WS_SIZE}', (f'buffer_store_dword v{FZA+1}, v{FZA}, {sr(SWS)}, s{sT} offen sc1', 'flagz')])]
    vq += [(RLB, rldma(SC, RLD, n)) for n in range(4)]
    ev = [(K0B, kdma(0, 'k0')), (K1B, kdma(1)), (V0B, vdma(0)), (RLR + 2, rlstore('a', 0, SD))]
    if opt.get('norl'): vq = vq[:-4]; ev = ev[:3]; RLR = 99
    for n0, its in sorted(ev, key=lambda x: x[0]): vq += [(n0, it) for it in its]
    assert K0B >= 23 and K1B >= 31 and V0B >= 39 and (24 <= RLR <= 37 or RLR == 99)
    def smf(d, a, b): return f'v_smfmac_f32_16x16x64_bf16 {R("v", d)}, {R("v", a)}, {b}, v{IDX}'
    for n in range(48):
        af = AF + 16 * (n & 1)
        if n < 16: (cc, b), acc = divmod(n, 4), HA + 16 * (n & 3)
        else: (cc, b), acc = divmod(n - 16, 8), QA + 16 * ((n - 16) & 7)
        def gram(q): return [mfma(R('v', GR + 4*q), R('a', 64*cc + 16*q + 4*ks), R('a', 64*cc + 16*q + 4*ks), '0' if cc + ks == 0 else R('v', GR + 4*q)) for ks in range(4)]
        def sumx(q): return [smf(SXA, OQ + 4*q, R('a', 64*cc + 16*q + 8*h, 8)) for h in range(2)]
        mf = []
        if n == 12: mf += [x for q in range(4) for x in gram(q)] + [x for q in range(4) for x in sumx(q)]
        if b < 2: mf += [smf(C1 + 4*b if n < 16 else CQ[b], ONES, R('v', af + 8*h, 8)) for h in range(2)]
        for qb in range(4):
            for ks in range(4):
                d = R('v', acc + 4 * qb)
                mf.append(mfma(d, R('v', af + 4 * ks), R('a', 64 * cc + 16 * qb + 4 * ks), '0' if cc + ks == 0 else d))
        if n < 12: mf += gram(b) + sumx(b)
        G_ = len(mf)
        gaps = {i: [] for i in range(G_)}
        first = 0
        bar = {3: 'w1_1', 7: 'w1_2', 11: 'w1_3', 15: 'wq0', 23: 'wq1', 31: 'wq2', 39: 'wq3', 44: 'k0'}.get(n)
        if bar:
            gaps[0] += [lambda bar=bar: e.vmwait(bar), 's_barrier']
            first = 1
        if n == 31: gaps[0] += [f'v_add_u32 v{WQA}, 0x10000, v{WQA}', f'v_add_u32 v{WQA+1}, 0x10000, v{WQA+1}']
        if n == 32: gaps[3] += [f'v_add_u32 v{WQA+2}, 0x10000, v{WQA+2}', f'v_add_u32 v{WQA+3}, 0x10000, v{WQA+3}']
        if n < 47:
            for i, x in enumerate(aread(n + 1)): gaps[first + 2 * (i >> 1)].append(x)
        if n < 12:
            gaps[first + XRG].append(lambda n=n: e.vmwait(f'x{4+n}'))
            for i, x in enumerate(xread(4 + n)): gaps[first + XRG + 2 * (i >> 1)].append(x)
        if RLR <= n < RLR + 2:
            if n == RLR: gaps[first + 8].append(lambda: e.vmwait('rl'))
            for k, x in enumerate(rlread('a', 0, RLA)[4 * (n - RLR):][:4]): gaps[first + 8 + 2 * (k >> 1)].append(x)
        if n == RLB - 1:
            assert 'wq3' not in vq[0][1][-1]
            for i, x in enumerate(rlw2): gaps[3 + i].insert(0, x)
        if n == 45:
            assert not vq
            for i, x in enumerate(rlwo): gaps[1 + i].insert(0, x)
        lo = 0
        for g in range(first + 1, G_ - 1, 4 if n < 17 else QSP):
            if vq and vq[0][0] <= n and sum(cost(x) for x in gaps[g]) < 2:
                items = vq.pop(0)[1]
                k = [i for i, it in enumerate(items) if isinstance(it, tuple)][0]
                for i, x in enumerate(items[:k]):
                    if g - k + i <= lo: gaps[lo].append(x)
                    else: gaps[g - k + i].insert(0, x)
                gaps[g].append(items[k])
                for x in items[k + 1:]: gaps[g + 1].insert(0, x)
                lo = g
        for g in range(G_):
            room = 2 - sum(cost(x) for x in gaps[g])
            for qu in (pq, fq):
                while qu:
                    x = qu[0]
                    if isinstance(x, tuple) and x[0] == 'AT':
                        if (n, g) < (x[1], x[2]): break
                    elif isinstance(x, tuple) and x[0] == 'BY': assert n <= x[1], (n, g, x)
                    elif cost(x) > room or (isinstance(x, str) and x.startswith('ds_') and g > G_ - 6): break
                    else: gaps[g].append(x); room -= cost(x)
                    qu.pop(0)
        gaps[G_ - 1].insert(0, 's_waitcnt lgkmcnt(0)')
        e.stream(mf, gaps)
        if n in (3, 7, 11, 15): stamp(e, opt, f'm{n >> 2}')
        if n in (23, 31, 39): stamp(e, opt, f'q{(n - 16) >> 3}')
    assert not vq and not pq
    stamp(e, opt, 'qproj')
    print('front-end ops left after the matmul stream:', len(fq))
    for x in csread(2) + csread(3): e(x)
    for x in fq: e.put(x)
    for i in range(4):
        if i == 2: e('s_waitcnt lgkmcnt(0)')
        for qb in range(4):
            src = [QA + 16 * (2 * i + hb) + 4 * qb + r for hb in range(2) for r in range(4)]
            m = f'v[{MS[qb]}:{MS[qb]+1}]'
            for k in range(4): e(f'v_pk_fma_f32 v[{src[2*k]}:{src[2*k]+1}], v[{AF+8*i+2*k}:{AF+8*i+2*k+1}], {m}, v[{src[2*k]}:{src[2*k]+1}] op_sel_hi:[1,0,1] neg_lo:[0,1,0] neg_hi:[0,1,0]')
            for k in range(4): e(f'v_pk_mul_f32 v[{src[2*k]}:{src[2*k]+1}], v[{src[2*k]}:{src[2*k]+1}], {m} op_sel:[0,1]')
            for k in range(4): e(f'v_cvt_pk_bf16_f32 v{src[k]}, v{src[2*k]}, v{src[2*k+1]}')
            for k in range(4): e(f'v_accvgpr_write_b32 a{aQ + 16*qb + 4*i + k}, v{src[k]}')
    e(f'''v_lshrrev_b32 v24, 2, v3
    v_and_b32 v25, 3, v3
    v_lshlrev_b32 v25, 8, v25
    v_lshl_add_u32 v25, v24, 13, v25
    v_and_b32 v24, 0xff, v{KD}
    v_add_u32 v{KA}, v24, v25''')
    for i in range(1, 4): e(f'v_xor_b32 v{KA+i}, {64*i}, v{KA}')
    e(f'''v_lshrrev_b32 v24, 2, v2
    v_and_b32 v25, 7, v24
    v_and_b32 v26, 3, v2
    v_and_b32 v24, 3, v24
    v_lshlrev_b32 v24, 8, v24
    v_lshl_add_u32 v24, v1, 13, v24
    v_lshl_add_u32 v24, v26, 3, v24
    v_add_u32 v24, 0x10000, v24
    v_lshl_add_u32 v{VA}, v25, 5, v24''')
    for db in range(1, 8): e(f'v_xor_b32 v{VA+db}, {32*db}, v{VA}')
    for i in range(0, 32, 2): e(f'v_mov_b64 v[{L+i}:{L+i+1}], 0')

    def kread(slot, kb, buf):
        return [f'ds_read_b128 {R("a", aK + 16*buf + 4*ds)}, v{KA+ds} offset:{slot*32768 + kb*1024}' for ds in range(4)]
    def vread(slot, db, buf):
        return [f'ds_read_b64_tr_b16 a[{aV+16*buf+4*ks+2*u}:{aV+16*buf+4*ks+2*u+1}], v{VA+db} offset:{slot*32768 + (2*ks+u)*1024}'
                for ks in range(4) for u in range(2)]
    def qk(buf, qb, sb, c):
        d = R('v', S + 4 * sb)
        return [mfma(d, R('a', aK + 16 * buf + 4 * ds), R('a', aQ + 16 * qb + 4 * ds), c if ds == 0 else d) for ds in range(4)]
    def rowmax_to_ci(src):
        for sw in ('v_permlane32_swap_b32', 'v_permlane16_swap_b32'):
            for qb in range(4): e(f'v_mov_b32 v{28+qb}, v{src+qb}')
            e('s_nop 0')
            for qb in range(4): e(f'{sw} v{src+qb}, v{28+qb}')
            e('s_nop 0')
            for qb in range(4): e(f'v_max_f32 v{src+qb}, v{src+qb}, v{28+qb}')
        for qb in range(4):
            for r in range(4): e(f'v_sub_f32 v{CI+4*qb+r}, 0, v{src+qb}')
    stamp(e, opt, 'epi1')
    e(f's_cmp_lg_u32 s{sPASS}, 0\ns_cbranch_scc1 K2_MAXP')
    for x in kread(0, 0, 0): e(x)
    e('s_waitcnt lgkmcnt(0)')
    for qb in range(4):
        for x in qk(0, qb, qb, '0'): e(x)
    e('s_nop 7')
    for qb in range(4): e(f'v_max3_f32 v{24+qb}, v{S+4*qb}, v{S+4*qb+1}, v{S+4*qb+2}')
    for qb in range(4): e(f'v_max_f32 v{24+qb}, v{24+qb}, v{S+4*qb+3}')
    rowmax_to_ci(24)
    e('K2_ATT:')
    e(f'''v_mov_b32 v24, 0
    v_mov_b32 v25, 1
    v_mov_b32 v26, 1
    s_lshr_b32 s{sT}, s2, 5
    s_lshl_b32 s{sT}, s{sT}, 5
    v_lshlrev_b32 v28, 8, v2''')
    e(f'''v_lshlrev_b32 v{TV}, 6, v2
    s_lshl_b32 s{sT}, s{sT}, 7
    s_mov_b32 s{ST}, s{SK}
    s_mov_b32 s{ST+1}, s{SK+1}
    s_mov_b32 s{ST+2}, 0x80000
    s_mov_b32 s{ST+3}, 0x20000
    s_mov_b32 s{sTZ}, 0x80000
    s_mov_b32 s{sTS}, 32768
    s_add_u32 s{sTO}, s{sT}, 65536
    s_cmp_eq_u32 s{sW}, 0
    s_cbranch_scc1 K2_TW
    s_mov_b32 s{ST}, s{SV}
    s_mov_b32 s{ST+1}, s{SV+1}
    s_add_u32 s{sTO}, s{sT}, 32768
    s_cmp_eq_u32 s{sW}, 1
    s_cbranch_scc1 K2_TW
    s_mov_b32 s{ST}, s{SWS}
    s_mov_b32 s{ST+1}, s{SWS+1}
    s_mov_b32 s{ST+2}, 0
    s_mov_b32 s{sTZ}, {WS_SIZE}
    s_mov_b32 s{sTS}, 20480
    s_and_b32 s{sT}, s{sTQ}, 3
    s_mul_i32 s{sT}, s{sT}, 5120
    s_add_u32 s{sTO}, s{sMA}, s{sT}
    s_sub_u32 s{sTO}, s{sTO}, {2048 + 4 * 20480 - 4096}
    v_mul_u32_u24 v{TV}, 80, v2
    s_cmp_eq_u32 s{sW}, 3
    s_cbranch_scc1 K2_TW
    s_mov_b32 s{sTS}, 10240
    s_mul_i32 s{sT}, s{sCT}, 1280
    s_add_u32 s{sTO}, s{sMB}, s{sT}
    s_sub_u32 s{sTO}, s{sTO}, {56 * 2048 + 4 * 10240 - 2048}
    v_lshrrev_b32 v27, 5, v2
    v_mul_u32_u24 v27, {56 * 2048}, v27
    v_and_b32 v{TV}, 31, v2
    v_mad_u32_u24 v{TV}, v{TV}, 40, v27
    K2_TW:
    v_lshrrev_b32 v27, 3, v2
    v_and_b32 v{WTV}, 7, v2
    v_lshlrev_b32 v{WTV}, 7, v{WTV}
    v_lshl_add_u32 v{WTV}, v27, 12, v{WTV}
    s_and_b32 s{sT}, s{sTQ}, 3
    s_lshl_b32 s{sT}, s{sT}, 10
    v_add_u32 v{WTV}, s{sT}, v{WTV}''')
    for i in range(2):
        e.vm(f'buffer_load_dword v{TD}, v{TV}, {sr(ST)}, s{sTO} offen sc1', 'touch')
        e(f's_add_u32 s{sTO}, s{sTO}, s{sTS}')

    def preg(par, qb, ks): return P + 64 * par + 16 * qb + 4 * ks
    def softmax_ops(gi, par):
        kb, qb = gi >> 2, gi & 3
        s = S + 4 * (gi & 3)
        p = preg(par, qb, kb >> 1) + 2 * (kb & 1)
        return ([f'v_exp_f32 v{s+r}, v{s+r}' for r in range(4)],
                [f'v_cvt_pk_bf16_f32 v{p+i}, v{s+2*i}, v{s+2*i+1}' for i in range(2)])
    def rowsum(par, sq, t): return f'v_smfmac_f32_16x16x64_bf16 {R("v", L+4*sq)}, {R("v", ONES)}, {R("v", preg(par, sq, 2*t), 8)}, v{IDX}'
    def m2loads(b):
        r = M2 + 16 * b
        return [(f'buffer_load_dwordx4 {R("v", r)}, v{L16}, {sr(SWS)}, s{sMA} offen{MSC}', f'm{b}'),
                (f'buffer_load_dwordx4 {R("v", r+8)}, v{L16}, {sr(SWS)}, s{sMB} offen{MSC}', f'm{b}'),
                (f'buffer_load_dwordx4 {R("v", r+4)}, v{L16}, {sr(SWS)}, s{sMA} offen offset:1024{MSC}', f'm{b}'),
                (f'buffer_load_dwordx4 {R("v", r+12)}, v{L16}, {sr(SWS)}, s{sMB} offen offset:1024{MSC}', f'm{b}')]
    m2adv = [f's_add_u32 s{sMA}, s{sMA}, 4096', f's_add_u32 s{sMB}, s{sMB}, 2048']
    def m2mfma(b):
        r = M2 + 16 * b
        return [mfma(R('v', G + 8 * a + 4 * q), R('v', r + 4 * a), R('v', r + 8 + 4 * q), R('v', G + 8 * a + 4 * q)) for a in range(2) for q in range(2)]
    def place(gaps, g, items):
        k = [i for i, it in enumerate(items) if isinstance(it, tuple)][0]
        for i, x in enumerate(items[:k]): gaps[g - k + i].insert(0, x)
        gaps[g].append(items[k])
        if g + 1 in gaps:
            for i, x in enumerate(items[k + 1:]): gaps[g + 1 + i].insert(0, x)
        else: gaps[g] += items[k + 1:]
    touch = [(f'buffer_load_dword v{TD}, v{TV}, {sr(ST)}, s{sTO} offen sc1', 'touch'), f's_add_u32 s{sTO}, s{sTO}, s{sTS}']
    def wotouch(i): return [f's_add_u32 s{sT}, s{sWO}, {32768 * i}', (f'buffer_load_dword v{TD}, v{WTV}, {sr(SWS)}, s{sT} offen sc1', 'touch')]

    def first_qk():
        p = 1
        dma = vdma(1)[:ND]
        for Q in range(8):
            mf, ex = [], []
            for qb in range(4):
                gi = 4 * Q + qb
                if gi >= 2: ex.append((len(mf), softmax_ops(gi - 2, 0)))
                mf += qk(Q & 1, qb, gi & 3, R('v', CI + 4 * qb))
            gaps = {i: [] for i in range(20)}
            reads = kread(0, Q + 1, (Q + 1) & 1) if Q < 7 else kread(1, 0, 0) + vread(0, 0, 0)
            for base, (xs, cs) in ex:
                for r in range(4): gaps[base + r].append(xs[r])
                gaps[base + 2].append(cs[0]); gaps[base + 4].append(cs[1])
            for i, x in enumerate(reads): gaps[1 + i].insert(0, x)
            gaps[15] += ['s_nop 0'] + gaps[16]
            if Q == 0: gaps[7].append('s_nop 0')
            if Q == 7:
                xs, cs = softmax_ops(30, 0)
                for it in dma:
                    k = [i for i, x in enumerate(it) if isinstance(x, tuple)][0]
                    gaps[15] += it[:k] + [xs.pop(0) if xs else 's_nop 0'] + it[k:]
                gaps[15] += xs + ['s_nop 0'] + cs
                gaps[0] = [lambda: e.vmwait('kv', 'hst', 'flagz'), 's_barrier'] + gaps[0]
            gaps[15].insert(0, 's_waitcnt lgkmcnt(0)')
            e.stream(mf, gaps)

    RG = [1, 1, 3, 7, 9, 9, 11, 15, 17, 17, 19, 23]
    RG2 = [1, 3, 5, 7, 9, 11, 13, 15, 17, 17, 19, 23]
    STEPQ, LOADQ = [0, 2, 3, 5, 7], [0, 1, 3, 4, 6]
    def arrive(k): return [(f'buffer_atomic_add v26, v28, {sr(SDBG)}, 0 offen offset:{128*k} sc0', 'arr')]
    def poll1(k): return [(f'buffer_load_dword v27, v24, {sr(SWS)}, s{sFL} offen offset:{128 + 4*k} sc1', 'poll')]
    def lastone(gaps, k):
        gaps[26].insert(0, lambda: e.vmwait('arr'))
        gaps[27].append(f'v_readfirstlane_b32 s{sT}, v26')
        gaps[30] = [f's_cmp_eq_u32 s{sT}, 255\ns_cbranch_scc1 K2_BCAST{k}\nK2_BACKB{k}:'] + gaps[30]
        gaps[31].append('v_mov_b32 v26, 1')
    def released(gaps, k, g):
        gaps[g].insert(0, lambda: e.vmwait('poll'))
        gaps[g + 1].append('v_cmp_ne_u32 vcc, 1, v27')
        gaps[g + 4] = [f's_cbranch_vccnz K2_SPIN{k}', f'K2_BACK{k}:'] + gaps[g + 4]
    def iteration(p, kind, tail=(), dma=None, nxt=None, extra=None, steps=STEPQ, loads=LOADQ, maxq=9, hook=None):
        if dma is None: dma = (vdma(1 - p) + kdma(p))[ND:]
        if nxt is None: nxt = vdma(p)[:ND]
        extra = {q: list(v) for q, v in (extra or {}).items()}
        if kind != 'last': extra[4] = [touch] + extra.get(4, [])
        for Q in range(8):
            mf, ex = [], []
            for qb in range(4):
                gi = 4 * Q + qb
                base = len(mf)
                mf += qk(Q & 1, qb, gi & 3, R('v', CI + 4 * qb))
                o = R('a', aO + 16 * Q + 4 * qb)
                mf += [mfma(o, R('a', aV + 16 * (Q & 1) + 4 * ks), R('v', preg(p, qb, ks)), '0' if (kind == 'first' and ks == 0) else o) for ks in range(4)]
                ex.append((base, softmax_ops(31, p) if gi == 0 else softmax_ops(gi - 1, 1 - p)))
            m2 = Q in steps
            if m2:
                sb = (STEPQ.index(Q) + 1 - p) & 1
                mf += m2mfma(sb)
            mf.append(rowsum(p, Q & 3, Q >> 2))
            last = len(mf) - 1
            gaps = {i: [] for i in range(len(mf))}
            if Q < 7: reads = kread(1 - p, Q + 1, (Q + 1) & 1) + vread(p, Q + 1, (Q + 1) & 1)
            else: reads = (kread(p, 0, 0) if kind != 'last' else []) + vread(1 - p, 0, 0)
            for g, x in zip(RG2 if Q in loads else RG, reads): gaps[g].append(x)
            for base, (xs, cs) in ex:
                for r in range(4): gaps[base + 2 * r].append(xs[r])
                gaps[base + 3].append(cs[0]); gaps[base + 7].append(cs[1])
            slots = [5, 13, 21, 25, 29, 33 if m2 else 32]
            if Q in loads:
                ml = m2loads((LOADQ.index(Q) + p) & 1)
                for g, x in zip((1, 5, 9), ml): gaps[g].append(x)
                place(gaps, 13, [ml[3]] + m2adv)
                slots = [21, 25, 29]
            if hook: slots = hook(Q, gaps, slots) or slots
            for it in extra.pop(Q, []): place(gaps, slots.pop(0), it)
            src = nxt if Q == 7 else dma
            for g in (slots if Q == 7 or len(slots) <= maxq else slots[::2][:maxq]):
                if src: place(gaps, g, src.pop(0))
            if m2: gaps[31].insert(0, lambda b=sb: e.vmwait(f'm{b}'))
            if Q == 7:
                gaps[0] = [lambda: e.vmwait('kv'), 's_barrier'] + gaps[0]
                if tail:
                    gaps[last - 1].insert(0, tail[0])
                    gaps[last] += tail[1:]
            gaps[last].insert(0, 's_waitcnt lgkmcnt(0)')
            e.stream(mf, gaps)
        assert not dma and not nxt and not extra

    pool1 = [R('a', r) for r in range(128, 224, 4)] + [R('v', r) for r in range(128, 192, 4)]
    pool2 = [R('a', r) for r in range(0, 128, 4)] + [R('a', r) for r in range(224, 256, 4)] + [R('v', r) for r in list(range(32, 64, 4)) + list(range(96, 128, 4))]
    where = {}
    n1 = len(pool1) // 4
    n2 = len(pool2) // 4 - ORING
    for i in range(n1): where[i] = pool1[4 * i:4 * i + 4]
    for i in range(n2): where[n1 + i] = pool2[4 * i:4 * i + 4]
    free = pool2[4 * n2:]
    LD0 = n1 + n2
    AREA = {LD0 + i: a for i, a in enumerate([EB, EB + 4096, 0, 4096, 65536, 65536 + 4096, 32768, 32768 + 4096, 98304, 98304 + 4096])}
    late = list(range(LD0 + 10, 32))
    def wodma(i):
        kk, out = LD0 + i, []
        for j in range(4):
            it = [f's_add_u32 m0, s{sW8K}, {AREA[kk]}', f's_add_u32 s{sK}, s{sWO}, {kk * 4096}'] if j == 0 else []
            out.append(it + [(f'buffer_load_dwordx4 v{L16}, {sr(SWS)}, s{sK} offen offset:{1024*j} sc1 lds', f'wo{kk}')])
        return out
    def fragload(kind, kk, slots):
        base, s_ = (sWO, sK) if kind == 'wo' else (sOB, sV)
        out = []
        for j in range(4):
            it = [f's_add_u32 s{s_}, s{base}, {kk * 4096}'] if j == 0 else []
            out.append(it + [(f'buffer_load_dwordx4 {slots[j]}, v{L16}, {sr(SWS)}, s{s_} offen offset:{1024*j} sc1', f'{kind}{kk}')])
        return out

    first_qk()
    stamp(e, opt, 'qk0')
    RD, RA, RB = M2, M2 + 1, M2 + 16
    def hook0(Q, gaps, slots):
        if Q == 1:
            ops = [f'v_lshrrev_b32 v{RA}, 3, v2', f'v_and_b32 v{RD}, 7, v2', f'v_lshlrev_b32 v{RD}, 4, v{RD}', f'v_lshl_add_u32 v{RD}, v{RA}, 10, v{RD}']
            for g, x in zip((27, 29, 29, 31), ops): gaps[g].append(x)
        if Q == 3:
            ops = [f'v_and_b32 v{RB}, 3, v2', f'v_lshrrev_b32 v{RA}, 2, v2', f'v_lshlrev_b32 v{RB}, 4, v{RB}', f'v_lshl_add_u32 v{RA}, v{RA}, 7, v{RB}',
                   f'v_add_u32 v{RA}, s{sW8K}, v{RA}', f'v_add_u32 v{RA}, {EB}, v{RA}']
            for g, x in zip((5, 5, 13, 13, 21, 21), ops): gaps[g].append(x)
        if Q == 6: lastone(gaps, 0)
    iteration(0, 'first', extra={2: [arrive(0)] + [rldma(SWQ, RD, n) for n in range(4)]}, steps=[], loads=[], hook=hook0)
    stamp(e, opt, 'it0')
    def hook1(Q, gaps, slots):
        if Q == 0:
            gaps[4].insert(0, lambda: e.vmwait('rl'))
            for g, x in zip((5, 5, 13, 13, 21, 21, 25, 25), rlread('v', RB, RA)): gaps[g].append(x)
            return [29, 32]
    iteration(1, 'mid', extra={1: rlstore('v', RB, SWS)}, steps=[], loads=[], hook=hook1)
    def hook2(Q, gaps, slots):
        if Q == 3:
            released(gaps, 0, 24)
            gaps[30].insert(0, f's_mov_b32 s{ST+2}, s{sTZ}')
        if Q == 6: lastone(gaps, 1)
    iteration(0, 'mid', tail=[f's_mov_b32 s{sCNT}, 5'], extra={2: [poll1(0), arrive(1)]}, steps=[], loads=[6], hook=hook2)
    stamp(e, opt, 'it2')
    e('.p2align 6\nK2_LOOP:')
    iteration(1, 'mid', tail=[f's_cmp_eq_u32 s{sCNT}, 0', 's_cbranch_scc1 K2_FIN'], extra={4: [poll1(1)]})
    keep = list(e.vml)
    iteration(0, 'mid', tail=[f's_sub_u32 s{sCNT}, s{sCNT}, 1', 's_branch K2_LOOP'])
    e.vml = keep
    e('K2_FIN:')
    stamp(e, opt, 'mid')
    cdma = wodma(4) + wodma(5)
    def hook14(Q, gaps, slots):
        if Q == 0:
            released(gaps, 1, 4)
            return [13, 21]
    iteration(0, 'last', dma=vdma(1)[ND:] + wodma(0) + wodma(1) + wodma(2) + wodma(3), nxt=cdma[:ND], steps=[0], loads=[],
              maxq=int(opt.get('maxq', 3)), hook=hook14)
    stamp(e, opt, 'loop')

    NPRE, NPOST, PACE = int(opt.get('npre', 26)), int(opt.get('npost', 12)), int(opt.get('pace', 4))
    mem = cdma[ND:] + [x for kk in range(n1) for x in fragload('wo', kk, where[kk])]
    srd_items = []
    for d, p_, sz in ((SX, pX, 0x200000), (SOUT, pOUT, 0x200000), (SB2, pB2, 1024)):
        srd_items += [f's_mov_b32 s{d}, s{p_}', f's_mov_b32 s{d+1}, s{p_+1}', f's_mov_b32 s{d+2}, {sz}', f's_mov_b32 s{d+3}, 0x20000']
    hi = [f'v_add_f32 v{L+4*qb+2}, v{L+4*qb}, v{L+4*qb+1}' for qb in range(4)]
    hi += [f'v_rcp_f32 v{L+4*qb+3}, v{L+4*qb+2}' for qb in range(4)]
    hi += [f'v_add_f32 v27, v{L+2}, v{L+6}', f'v_add_f32 v26, v{L+10}, v{L+14}', 'v_and_b32 v24, 3, v2', 'v_add_f32 v27, v27, v26',
           'v_lshlrev_b32 v24, 13, v24', f'v_cmp_ngt_f32 vcc, s{sC1}, v27', f's_lshl_b32 s{sT}, s{sW}, 2', f'v_add_u32 v24, s{sT}, v24',
           f's_cmp_lg_u64 vcc, 0\ns_cselect_b32 s{sC0}, 1, 0', f'v_mov_b32 v27, s{sC0}', 'ds_write_b32 v24, v27 offset:32768',
           f'v_mov_b32 v25, s{sW8K}']
    epi = []
    tb = [32, 40, 48, 56, 96, 104, 112, 120]
    for t in range(4):
        for qb in range(4):
            b = tb[(4 * t + qb) % 8]
            ops = [f'v_accvgpr_read_b32 v{b+4*h+r}, a{aO + 16*(2*t+h) + 4*qb + r}' for h in range(2) for r in range(4)]
            ops += [f'v_mul_f32 v{b+i}, v{b+i}, v{L+4*qb+3}' for i in range(8)]
            ops += [f'v_cvt_pk_bf16_f32 v{b+i}, v{b+2*i}, v{b+2*i+1}' for i in range(4)]
            if qb == 0: ops.append(f's_add_u32 s{sV}, s{sXB}, {4096 * t}')
            ops.append((f'buffer_store_dwordx4 {R("v",b)}, v{L16}, {sr(SWS)}, s{sV} offen offset:{1024*qb} sc1', 'ost'))
            epi += [(2 * t + 2, x) for x in ops]
    e(f'''s_mov_b32 s{sC1}, {f2u(2.0**int(opt.get('thr', 60))):#x}
    s_lshl_b32 s{sXB}, s{sQB}, 17
    s_lshl_b32 s{sT}, s{sHEAD}, 14
    s_add_u32 s{sXB}, s{sXB}, s{sT}
    s_add_u32 s{sXB}, s{sXB}, {O_OFF}''')
    gi, lastvm, npre = 0, -9, 0
    for Q in range(8):
        mf = []
        for qb in range(4):
            o = R('a', aO + 16 * Q + 4 * qb)
            mf += [mfma(o, R('a', aV + 16 * (Q & 1) + 4 * ks), R('v', preg(1, qb, ks)), o) for ks in range(4)]
        if Q == 0: mf += [rowsum(1, sq, t) for t in range(2) for sq in range(4)]
        last = len(mf) - 1
        gaps = {i: [] for i in range(len(mf))}
        reads = vread(1, Q + 1, (Q + 1) & 1) if Q < 7 else []
        off = 0
        if Q == 0:
            xs, cs = softmax_ops(31, 1)
            for r in range(4): gaps[r].append(xs[r])
            gaps[4] += cs
            off = 5
            for i, x in enumerate(srd_items): gaps[5 + i].append(x)
        if Q == 3:
            assert not hi
            gaps[0] += ['s_barrier', 'ds_read_b128 v[24:27], v25 offset:32768']
            off = 1
        for i, x in enumerate(reads): gaps[off + i].append(x)
        if Q == 4:
            gaps[0].append('v_or_b32 v24, v24, v25'); gaps[1].append('v_or3_b32 v24, v24, v26, v27')
            gaps[2].append(f'v_readfirstlane_b32 s{sC0}, v24')
            gaps[4].insert(0, f's_andn2_b32 s{sC0}, s{sC0}, s{sPASS}\ns_cbranch_scc1 K2_SLOW')
            gaps[5].insert(0, 's_waitcnt vmcnt(30)')
        for i in range(len(mf)):
            room = 2 - sum(cost(x) for x in gaps[i])
            if room > 0 and npre < NPRE and gi - lastvm >= PACE:
                items = mem.pop(0)
                gaps[i] += items; room -= min(2, len(items)); npre += 1; lastvm = gi
            while room > 0:
                if hi and (Q, i) >= (1, 3) and not (Q == 2 and i > 10): x = hi.pop(0)
                elif epi and (epi[0][0] < Q or (epi[0][0] == Q and i >= 2)): x = epi.pop(0)[1]
                else: break
                if isinstance(x, tuple): lastvm = gi
                gaps[i].append(x); room -= cost(x)
            gi += 1
        if reads: gaps[last].insert(0, 's_waitcnt lgkmcnt(0)')
        e.stream(mf, gaps)
    e('s_nop 4')
    for _, x in epi: e.put(x)
    stamp(e, opt, 'pvlast')
    mem += wodma(6) + wodma(7) + [x for kk in range(n1, LD0) for x in fragload('wo', kk, where[kk])] + wodma(8) + wodma(9)
    assert len(mem) - 8 >= NPOST
    e(f's_waitcnt vmcnt({60 - NPOST})')
    for _ in range(NPOST): run(mem.pop(0))
    e(f'''s_lshr_b32 s{sT}, s{sW}, 1
    s_lshl_b32 s{sC0}, s{sTQ}, 1
    s_add_u32 s{sC0}, s{sC0}, s{sT}
    s_lshl_b32 s{sC0}, s{sC0}, 15
    s_and_b32 s{sT}, s{sW}, 1
    s_lshl_b32 s{sC1}, s{sCT}, 1
    s_add_u32 s{sC1}, s{sC1}, s{sT}
    s_lshl_b32 s{sC1}, s{sC1}, 6
    v_lshl_add_u32 v8, v1, 4, s{sC1}
    v_lshl_add_u32 v9, v3, 10, v8
    v_add_u32 v9, s{sC0}, v9
    v_add_u32 v10, 0x4000, v9
    v_add_u32 v12, s{sW8K}, v{L16}
    v_add_u32 v13, 0x10000, v12
    v_add_u32 v14, 0x20000, v12
    s_lshl_b32 s{sT}, s{sT}, 15
    s_lshr_b32 s{sC0}, s{sW}, 1
    s_lshl_b32 s{sC0}, s{sC0}, 11
    s_add_u32 s{sT}, s{sT}, s{sC0}
    v_add_u32 v15, s{sT}, v{L16}
    v_mov_b32 v25, 1
    v_lshlrev_b32 v26, 8, v2
    s_lshr_b32 s{sXB}, s2, 5
    s_lshl_b32 s{sXB}, s{sXB}, 13
    s_lshl_b32 s{sT}, s{sHEAD}, 2
    s_add_u32 s{sXB}, s{sXB}, s{sT}
    s_add_u32 s{sXB}, s{sXB}, {FL_OFF}
    v_and_b32 v24, 7, v2
    s_lshl_b32 s{sT}, s{sW}, 5
    v_lshl_add_u32 v24, v24, 2, s{sT}
    v_lshrrev_b32 v16, 2, v2
    v_and_b32 v17, 3, v2
    v_lshlrev_b32 v17, 7, v17
    v_lshl_add_u32 v16, v16, 12, v17
    s_lshl_b32 s{sT}, s{sCT}, 9
    v_add_u32 v16, s{sT}, v16
    s_add_u32 s{sC1}, s{sOB}, 65536
    v_mov_b32 v28, 1''')
    e.vmwait('ost')
    e('s_barrier')
    e(f'''s_cmp_lg_u32 s{sW}, 0
    s_cbranch_scc1 K2_SIG2
    s_mov_b32 exec_hi, 0
    buffer_store_dword v25, v26, {sr(SWS)}, s{sXB} offen sc1
    s_mov_b64 exec, -1
    K2_SIG2:''')
    stamp(e, opt, 'drain')
    e.vm(f'buffer_load_dwordx4 v[4:7], v8, {sr(SB2)}, 0 offen', 'b2')
    e.vm(f'buffer_load_dwordx4 v[68:71], v9, {sr(SX)}, 0 offen', 'x')
    e.vm(f'buffer_load_dwordx4 v[72:75], v10, {sr(SX)}, 0 offen', 'x')
    poll = f'buffer_load_dword v27, v24, {sr(SWS)}, s{sFL} offen sc1'
    otouch = '' if opt.get('noot') else f'buffer_load_dword v{TD}, v16, {sr(SWS)}, s{sOB} offen sc1\nbuffer_load_dword v{TD}, v16, {sr(SWS)}, s{sC1} offen sc1\n'
    BATCH = int(opt.get('batch', 8))
    nb_ = 0
    while mem:
        if nb_: e.vm(poll, 'poll')
        for _ in range(min(BATCH, len(mem))): run(mem.pop(0))
        if nb_:
            e.vmwait('poll')
            e(f'v_cmp_ne_u32 vcc, v28, v27\ns_nop 4\ns_cbranch_vccnz K2_PB{nb_}\n{otouch}v_mov_b32 v28, -1\nK2_PB{nb_}:')
        if nb_ == 1:
            e(f's_mov_b32 s{sT}, {f2u(-LOG2E):#x}')
            for i in range(4): e(f'v_lshlrev_b32 v{192+2*i}, 16, v{4+i}\nv_and_b32 v{193+2*i}, 0xffff0000, v{4+i}')
            gs = [(G + 8 * a + 4 * q + r, 192 + 4 * a + r, 200 + 8 * a + 4 * q + r) for a in range(2) for q in range(2) for r in range(4)]
            for g, b, t in gs: e(f'v_add_f32 v{g}, v{g}, v{b}')
            for g, b, t in gs: e(f'v_mul_f32 v{t}, s{sT}, v{g}')
            for g, b, t in gs: e(f'v_exp_f32 v{t}, v{t}')
            for g, b, t in gs: e(f'v_add_f32 v{t}, 1.0, v{t}')
            for g, b, t in gs: e(f'v_rcp_f32 v{t}, v{t}')
            for g, b, t in gs: e(f'v_mul_f32 v{g}, v{g}, v{t}')
        nb_ += 1
    stamp(e, opt, 'sent')
    e(f'''v_cmp_ne_u32 vcc, 1, v28
    s_mov_b32 s{sCNT}, 200000
    s_nop 3
    s_cbranch_vccnz K2_RDY
    K2_POLL2:
    {poll}
    s_waitcnt vmcnt(0)
    v_cmp_ne_u32 vcc, 1, v27
    s_sub_u32 s{sCNT}, s{sCNT}, 1
    s_cbranch_scc1 K2_RDY
    s_nop 2
    s_cbranch_vccnz K2_POLL2
    {otouch}
    K2_RDY:''')
    stamp(e, opt, 'wait')
    ACC = 192
    oat = {}
    queue = []
    for kk in range(32):
        if kk in late: queue.append(('wo', kk))
        queue.append(('o', kk))
    def issue_next():
        kind, kk = queue.pop(0)
        sl = [free.pop(0) for _ in range(4)]
        (where if kind == 'wo' else oat)[kk] = sl
        return fragload(kind, kk, sl)
    while len(free) >= 4:
        for it in issue_next(): run(it)
    def ldsread(kk):
        a = AREA[kk]
        return [f'ds_read_b128 {where[kk][j]}, v{12 + (a >> 16)} offset:{(a & 0xffff) + 1024*j}' for j in range(4)]
    e.vmwait('o0')
    stamp(e, opt, 'o1st')
    for kk in range(32):
        mf = []
        for nb in range(4):
            for qb in range(4):
                d = R('v', ACC + 16 * nb + 4 * qb)
                mf.append(mfma(d, where[kk][nb], oat[kk][qb], '0' if kk == 0 else d))
        gaps = {i: [] for i in range(16)}
        nk = kk + 1
        if nk in AREA:
            where[nk] = [free.pop(0) for _ in range(4)]
            for i, x in enumerate(ldsread(nk)): gaps[1 + 2 * i].append(x)
        inflight = e.vmn(f'o{kk}')
        its = []
        while queue and len(free) >= 4 and len(its) < 8 and inflight + 4 <= MAXFLY:
            its += issue_next(); inflight += 4
        for i, it in enumerate(its): gaps[i * (4 if len(its) == 4 else 2)] += it
        if nk < 32: gaps[15].append(lambda nk=nk: e.vmwait(f'o{nk}', f'wo{nk}', extra=' lgkmcnt(0)' if nk in AREA else ''))
        e.stream(mf, gaps)
        free += where[kk] + oat[kk]
    assert not queue
    stamp(e, opt, 'main')
    e('s_nop 4')
    for f in range(16):
        e(f'ds_write_b128 v12, {R("v", ACC + 4*f)} offset:{(f >> 3) * 32768 + (f & 7) * 1024}')
        if f == 11: e('s_waitcnt lgkmcnt(4)')
    for q in range(2):
        for i in range(4): e(f'v_lshlrev_b32 v{32+8*q+2*i}, 16, v{68+4*q+i}\nv_and_b32 v{33+8*q+2*i}, 0xffff0000, v{68+4*q+i}')
    e('s_waitcnt lgkmcnt(0)\ns_barrier')
    for q in range(2):
        for a in range(2):
            for s_ in range(4): e(f'ds_read_b128 {R("v", 128 + 32*q + 16*a + 4*s_)}, v15 offset:{s_*8192 + a*4096 + q*1024}')
        if q == 0: e('s_waitcnt lgkmcnt(4)')
    for q in range(2):
        e(f's_waitcnt lgkmcnt({8 - 8*q})')
        for a in range(2):
            b = 128 + 32 * q + 16 * a
            for r in range(4): e(f'v_add_f32 v{b+r}, v{b+r}, v{b+4+r}\nv_add_f32 v{b+8+r}, v{b+8+r}, v{b+12+r}')
            for r in range(4): e(f'v_add_f32 v{b+r}, v{b+r}, v{b+8+r}')
            for r in range(4): e(f'v_fma_f32 v{32+8*q+4*a+r}, v{b+r}, v{G+8*a+4*q+r}, v{32+8*q+4*a+r}')
        for i in range(4): e(f'v_cvt_pk_bf16_f32 v{48+4*q+i}, v{32+8*q+2*i}, v{33+8*q+2*i}')
        e(f'buffer_store_dwordx4 {R("v", 48+4*q)}, v{9+q}, {sr(SOUT)}, 0 offen')
    if opt.get('ts'):
        e(f's_waitcnt vmcnt(0)\ns_memrealtime s[{64+2*NSTAMP}:{65+2*NSTAMP}]\ns_memtime s[46:47]\ns_waitcnt lgkmcnt(0)')
        srd(e, 28, pWS, TS_OFF, 0x20000)
        e(f'v_mov_b32 v2, s{sW}\ns_lshl_b32 s3, s2, 2\nv_add_u32 v2, s3, v2\nv_lshlrev_b32 v2, 6, v2')
        for k, s_ in enumerate([62] + [64 + 2 * i for i in range(NSTAMP)] + [46, 64 + 2 * NSTAMP]):
            e(f'v_mov_b32 v3, s{s_}\nbuffer_store_dword v3, v2, s[28:31], 0 offen offset:{4*k}')
    e('K2_END:\ns_endpgm')
    for k in range(2):
        e(f'''K2_SPIN{k}:
        s_mov_b32 s{sCNT}, 200000
        K2_SPINL{k}:
        {poll1(k)[0][0]}
        s_waitcnt vmcnt(0)
        v_cmp_ne_u32 vcc, 1, v27
        s_sub_u32 s{sCNT}, s{sCNT}, 1
        s_cbranch_scc1 K2_BACK{k}
        s_nop 2
        s_cbranch_vccnz K2_SPINL{k}
        s_branch K2_BACK{k}''')
        e(f'K2_BCAST{k}:')
        for i in range(4): e(f's_mov_b32 s{sT}, {FL_OFF + 128 + 4 * k + i * 16384}\nbuffer_store_dword v25, v28, {sr(SWS)}, s{sT} offen sc1')
        e(f's_branch K2_BACKB{k}')
    e(f'''K2_SLOW:
    s_mov_b32 s{sPASS}, 1
    s_waitcnt vmcnt(0) lgkmcnt(0)
    s_nop 7
    s_barrier
    s_lshl_b32 s{sT}, s{sW}, 6
    v_add_u32 v0, s{sT}, v2
    s_branch K2_TOP
    K2_MAXP:
    s_mov_b32 s{sK}, s{sW8K}
    s_mov_b32 s{sCNT}, 16
    s_waitcnt vmcnt(0)''')
    for qb in range(4): e(f'v_mov_b32 v{24+qb}, 0xff800000')
    e('K2_MAXL:\ns_barrier')
    for it in kdma(0): run(it)
    e('s_waitcnt vmcnt(0)\ns_barrier')
    for kb in range(8):
        for x in kread(0, kb, 0): e(x)
        e('s_waitcnt lgkmcnt(0)')
        for qb in range(4):
            for x in qk(0, qb, qb, '0'): e(x)
        e('s_nop 7')
        for qb in range(4): e(f'v_max3_f32 v{24+qb}, v{24+qb}, v{S+4*qb}, v{S+4*qb+1}')
        for qb in range(4): e(f'v_max3_f32 v{24+qb}, v{24+qb}, v{S+4*qb+2}, v{S+4*qb+3}')
    e(f's_sub_u32 s{sCNT}, s{sCNT}, 1\ns_cmp_lg_u32 s{sCNT}, 0\ns_cbranch_scc1 K2_MAXL')
    rowmax_to_ci(24)
    e(f's_mov_b32 s{sK}, s{sW8K}\ns_barrier')
    for it in kdma(0): run(it)
    e(f's_add_u32 s{sK}, s{sK}, 32768\ns_waitcnt vmcnt(0)\ns_barrier')
    for x in kread(0, 0, 0): e(x)
    e('s_waitcnt lgkmcnt(0)\nK2_LAST:\ns_branch K2_ATT')
    return kdesc(KN, 512, 256, 102)

def build(opt):
    e = E()
    head = open(f'cdna_kernels/{NAME}.s.ref').read().split('; Override launch')[0]
    head += '; @launch grid=(256,1,1) block=(256,1,1) lds=163840\n'
    e('.amdgcn_target "amdgcn-amd-amdhsa--gfx950"\n.text')
    d = k2(e, opt)
    return head + e.text() + '.section .rodata,"a"\n' + d

if __name__ == '__main__':
    out = sys.argv[1] if len(sys.argv) > 1 else f'cdna_kernels/{NAME}.s'
    opt = dict(a.split('=') if '=' in a else (a, 1) for a in sys.argv[2:])
    txt = build(opt)
    open(out, 'w').write(txt)
    import chk
    errs = chk.check(txt)
    for x in errs[:40]: print(x)
    print(f'{out}: {len(txt)} bytes, {len(errs)} hazard problems')
```
